```python
import torch

def _softmax(x, axis=-1):
    return torch.softmax(x, dim=axis)

def _gelu(x):
    return torch.nn.functional.gelu(x, approximate='tanh')

def _silu(x):
    return torch.nn.functional.silu(x)

def _sigmoid(x):
    return torch.sigmoid(x)

def _layernorm(x, axis=-1, eps=1e-05):
    m = x.mean(dim=axis, keepdim=True)
    v = x.var(dim=axis, keepdim=True, unbiased=False)
    return (x - m) / torch.sqrt(v + eps)

def _scatter_add(tgt, idx, src, axis=0):
    return tgt.clone().index_add_(axis, idx, src)

def _segment_sum(src, seg, n):
    out = torch.zeros((n,) + src.shape[1:], dtype=src.dtype)
    return out.index_add_(0, seg, src)

def _pad(x, pw):
    flat = tuple((v for pair in reversed(pw) for v in pair))
    return torch.nn.functional.pad(x, flat)
kernel_name = 'adaLN_cond__spectral_gfnet__dense_activation_silu__prompt'

def setup_inputs():

    _w = lambda a: (lambda t: t.to(torch.bfloat16) if t.is_floating_point() else t)(torch.as_tensor(a))

    def _A_setup():
        B, S, D = (1, 2048, 576)
        Df = D // 2 + 1
        return {'x': _w((lambda *s: torch.randn(*s, dtype=torch.bfloat16) * 0.05)(B, S, D)), 'w_r': _w((lambda *s: torch.randn(*s, dtype=torch.bfloat16) * 1.6)(S, Df) * 0.02), 'w_i': _w((lambda *s: torch.randn(*s, dtype=torch.bfloat16) * 1.6)(S, Df) * 0.02)}
    _A_in = _A_setup()

    def _B_setup():
        B, S, D, F = (1, 2048, 576, 4608)
        return {'x': _w((lambda *s: torch.randn(*s, dtype=torch.bfloat16) * 0.05)(B, S, D)), 'w1': _w((lambda *s: torch.randn(*s, dtype=torch.bfloat16) * 0.8)(D, F) * D ** (-0.5)), 'w2': _w((lambda *s: torch.randn(*s, dtype=torch.bfloat16) * 0.2)(F, D) * F ** (-0.5))}
    _B_in = _B_setup()
    return {'A_x': _A_in['x'], 'A_w_r': _A_in['w_r'], 'A_w_i': _A_in['w_i'], 'B_x': _B_in['x'], 'B_w1': _B_in['w1'], 'B_w2': _B_in['w2'], 'c': _w((lambda *s: torch.randn(*s, dtype=torch.bfloat16) * 0.2)(1, 576) * 8.0), 'w_mod': _w((lambda *s: torch.randn(*s, dtype=torch.bfloat16) * 0.2)(576, 6 * 576) * 576 ** (-0.5) * 8.0)}

def reference(A_x, A_w_r, A_w_i, B_x, B_w1, B_w2, c, w_mod):

    def _A_ref(x, w_r, w_i):
        B, S, D = x.shape
        X = (lambda x, axes=(-2, -1): torch.fft.rfft2(x.float(), dim=axes))(x, axes=(-2, -1))
        W = w_r + 1j * w_i
        X = X * W
        y = (lambda x, s, axes=(-2, -1): torch.fft.irfft2(x, s=s, dim=axes).to(torch.bfloat16))(X, (S, D), axes=(-2, -1))
        return y

    def _B_ref(x, w1, w2):
        h = torch.einsum('bsd,df->bsf', x, w1)
        h = _silu(h)
        out = torch.einsum('bsf,fd->bsd', h, w2)
        return out
    x = A_x
    mod = (_silu(c) @ w_mod).reshape(c.shape[0], 6, 1, -1)
    sa, ca, ga, sb, cb, gb = (mod[:, 0].clone(), mod[:, 1].clone(), mod[:, 2].clone(), mod[:, 3].clone(), mod[:, 4].clone(), mod[:, 5].clone())
    h = _layernorm(x, axis=-1) * (1 + ca) + sa
    x = x + ga * _A_ref(h, A_w_r, A_w_i)
    h = _layernorm(x, axis=-1) * (1 + cb) + sb
    x = x + gb * _B_ref(h, B_w1, B_w2)
    return x
```

```python
import re

TRANS = ('v_exp_f32', 'v_log_f32', 'v_rcp_f32', 'v_rsq_f32', 'v_sqrt_f32', 'v_sin_f32', 'v_cos_f32')

def _regs(tok):
    t = tok.strip()
    neg = False
    while t.startswith('-') or t.startswith('|'):
        t = t[1:]
    t = t.rstrip('|')
    if t.startswith('abs(') and t.endswith(')'):
        t = t[4:-1]
    m = re.fullmatch(r'([vsa])(\d+)', t)
    if m:
        return m.group(1), [int(m.group(2))]
    m = re.fullmatch(r'([vsa])\[(\d+):(\d+)\]', t)
    if m:
        return m.group(1), list(range(int(m.group(2)), int(m.group(3)) + 1))
    if t in ('vcc', 'vcc_lo', 'vcc_hi'):
        return 's', [106, 107]
    if t == 'exec':
        return 's', [126, 127]
    if t == 'm0':
        return 's', [124]
    return None, []

class Ins:
    __slots__ = ('text', 'mn', 'kind', 'vw', 'vr', 'sw', 'sr', 'pos', 'passes', 'wide_store', 'src_c', 'is_trans')

class Asm:
    def __init__(self):
        self.lines = []
        self.hist = []
        self.pos = 0
        self.count = 0

    def raw(self, s):
        self.lines.append(s)

    def c(self, s):
        self.lines.append('    ; ' + s)

    def label(self, name):
        self.lines.append(name + ':')

    def nop(self, n):
        while n > 0:
            k = min(n, 16)
            self.lines.append(f'    s_nop {k-1}')
            self.pos += k
            self.count += 1
            n -= k

    def _classify(self, text):
        I = Ins()
        I.text = text
        parts = text.split(None, 1)
        mn = parts[0]
        ops = []
        if len(parts) > 1:
            raw_ops = [o.strip() for o in parts[1].split(',')]
            for o in raw_ops:
                toks = o.split()
                if toks:
                    ops.append(toks[0])
        I.mn = mn
        I.vw, I.vr, I.sw, I.sr = [], [], [], []
        I.passes = 0; I.wide_store = False; I.src_c = []; I.is_trans = False
        def addr(tok, w):
            k, idx = _regs(tok)
            if k in ('v', 'a'):
                base = 0 if k == 'v' else 512
                (I.vw if w else I.vr).extend(base + x for x in idx)
            elif k == 's':
                (I.sw if w else I.sr).extend(idx)
        if mn.startswith('v_mfma'):
            I.kind = 'mfma'
            addr(ops[0], True)
            for o in ops[1:4]:
                addr(o, False)
            k, idx = _regs(ops[3])
            I.src_c = [(0 if k == 'v' else 512) + x for x in idx]
            if '32x32x16' in mn or '32x32x8' in mn:
                I.passes = 8
            elif '16x16x32' in mn or '16x16x16' in mn:
                I.passes = 4
            else:
                I.passes = 16
        elif mn.startswith('v_'):
            I.kind = 'valu'
            I.is_trans = mn in TRANS or mn.replace('_e32', '').replace('_e64', '') in TRANS
            if mn.startswith('v_cmp'):
                addr(ops[0], True)
                for o in ops[1:]:
                    addr(o, False)
            elif mn.startswith(('v_add_co', 'v_sub_co', 'v_subrev_co')):
                addr(ops[0], True); addr(ops[1], True)
                for o in ops[2:]:
                    addr(o, False)
            elif mn.startswith(('v_addc_co', 'v_subb_co')):
                addr(ops[0], True); addr(ops[1], True)
                for o in ops[2:]:
                    addr(o, False)
            elif mn.startswith(('v_mad_u64_u32',)):
                addr(ops[0], True); addr(ops[1], True)
                for o in ops[2:]:
                    addr(o, False)
            else:
                addr(ops[0], True)
                for o in ops[1:]:
                    addr(o, False)
                if mn.startswith(('v_fmac', 'v_pk_fmac', 'v_permlane', 'v_swap')):
                    k, idx = _regs(ops[0])
                    I.vr.extend(idx)
                if mn.startswith('v_permlane') and len(ops) > 1:
                    k, idx = _regs(ops[1]); I.vw.extend(idx)
        elif mn.startswith(('buffer_', 'global_', 'flat_')):
            I.kind = 'vmem'
            is_store = 'store' in mn or 'atomic' in mn
            lds = ' lds' in (' ' + text) and text.rstrip().endswith('lds') or 'load_lds' in mn
            if is_store:
                for o in ops:
                    addr(o, False)
                I.wide_store = ('x4' in mn or 'x3' in mn)
            else:
                if not lds:
                    addr(ops[0], True)
                    rest = ops[1:]
                else:
                    rest = ops
                for o in rest:
                    addr(o, False)
        elif mn.startswith('ds_'):
            I.kind = 'ds'
            if mn.startswith(('ds_read', 'ds_bpermute', 'ds_permute', 'ds_swizzle')):
                addr(ops[0], True)
                for o in ops[1:]:
                    addr(o, False)
            else:
                for o in ops:
                    addr(o, False)
        elif mn.startswith(('s_load', 's_buffer_load')):
            I.kind = 'smem'
            addr(ops[0], True)
            for o in ops[1:]:
                addr(o, False)
        elif mn.startswith('s_'):
            I.kind = 'salu'
            if mn.startswith(('s_cmp', 's_cbranch', 's_branch', 's_waitcnt', 's_barrier', 's_endpgm', 's_setprio', 's_sleep')):
                for o in ops:
                    addr(o, False)
            else:
                addr(ops[0], True)
                for o in ops[1:]:
                    addr(o, False)
        else:
            I.kind = 'other'
        return I

    def _need(self, P, C):
        need = 0
        if P.kind == 'valu':
            vw = set(P.vw); sw = set(P.sw)
            if C.kind == 'valu':
                if P.is_trans and not C.is_trans and (vw & set(C.vr)):
                    need = max(need, 1)
                if C.mn.startswith(('v_readfirstlane', 'v_readlane')) and (vw & set(C.vr)):
                    need = max(need, 1)
                if sw and (sw & set(C.sr)):
                    need = max(need, 2)
                if C.mn.startswith(('v_permlane',)) and (vw & (set(C.vr) | set(C.vw))):
                    need = max(need, 2)
                if 'dpp' in C.text and (vw & set(C.vr)):
                    need = max(need, 2)
            if C.kind == 'vmem' and sw and (sw & set(C.sr)):
                need = max(need, 5)
            if C.kind == 'mfma' and (vw & set(C.vr)):
                need = max(need, 2)
            if C.kind in ('salu',) and sw and (sw & set(C.sr)):
                need = max(need, 1)
        if P.kind == 'mfma':
            d = set(P.vw)
            ps = P.passes
            t_valu = {2: 5, 4: 8, 8: 12, 16: 20}[ps]
            t_ab = {2: 5, 4: 8, 8: 12, 16: 20}[ps]
            t_cov = {2: 4, 4: 6, 8: 10, 16: 18}[ps]
            if C.kind in ('valu', 'vmem', 'ds'):
                if d & (set(C.vr) | set(C.vw)):
                    need = max(need, t_valu)
            if C.kind == 'mfma':
                cset = set(C.src_c)
                abset = set(C.vr) - cset if True else set()
                ab = [r for r in C.vr if r not in cset]
                if d & set(ab):
                    need = max(need, t_ab)
                if d & cset:
                    if d == cset and C.passes == P.passes:
                        need = max(need, 2 if ps == 2 else 0)
                    else:
                        need = max(need, t_cov)
        if C.kind == 'valu' and P.kind == 'mfma':
            if set(P.src_c) & set(C.vw):
                need = max(need, {2: 1, 4: 3, 8: 7, 16: 15}[P.passes])
        if P.kind == 'vmem' and P.wide_store and C.kind == 'valu':
            if set(P.vr) & set(C.vw):
                need = max(need, 2)
        if P.kind == 'salu' and 124 in P.sw and C.kind == 'vmem' and (' lds' in C.text or 'load_lds' in C.mn):
            need = max(need, 1)
        return need

    def i(self, text):
        m = re.search(r'offset:(\d+)', text)
        if m:
            lim = 4096 if text.startswith(('buffer_',)) else 65536
            if text.startswith('global_'): lim = 4096
            assert int(m.group(1)) < lim, f'immediate offset out of range: {text}'
        I = self._classify(text)
        pad = 0
        for P in self.hist[-24:]:
            dist = self.pos - P.pos - 1
            n = self._need(P, I)
            if n > dist:
                pad = max(pad, n - dist)
        if pad:
            self.nop(pad)
        I.pos = self.pos
        self.pos += 1
        self.count += 1
        self.hist.append(I)
        if len(self.hist) > 64:
            self.hist = self.hist[-32:]
        self.lines.append('    ' + text)

    def fence(self, n=20):
        self.nop(n) if n else None
        self.hist = []

    def text(self):
        return '\n'.join(self.lines) + '\n'


class Pool:
    def __init__(self, lo, hi):
        self.free = list(range(lo, hi))
        self.lo, self.hi = lo, hi
        self.maxused = lo
    def get(self):
        r = self.free.pop(0)
        self.maxused = max(self.maxused, r + 1)
        return r
    def get_aligned(self, n, align):
        fs = set(self.free)
        for base in sorted(self.free):
            if base % align == 0 and all((base + k) in fs for k in range(n)):
                for k in range(n):
                    self.free.remove(base + k)
                self.maxused = max(self.maxused, base + n)
                return base
        raise RuntimeError('no aligned regs')
    def put(self, *rs):
        for r in rs:
            assert r not in self.free, r
            self.free.append(r)
        self.free.sort()
```

```python
import struct, math
from asmlib import Asm, Pool

def fb(x):
    return '0x%08x' % struct.unpack('<I', struct.pack('<f', x))[0]

S, D, DF, F = 2048, 576, 289, 4608
KA_X, KA_WR, KA_WI, KA_BX, KA_W1, KA_W2, KA_C, KA_WMOD, KA_OUT, KA_DBG, KA_WS = 0, 8, 16, 24, 32, 40, 48, 56, 64, 72, 80
WS_MOD = 0x0
WS_WT = 0x10000
WS_XF = 0x300000
WS_X2 = 0x800000
WS_H2 = 0xB00000
WS_ACT = 0x1000000
WS_PART = 0x2400000
SZ_MOD = 6 * D * 4
SZ_WT = DF * S * 4
SZ_XF = DF * S * 8
SZ_X2 = S * D * 2
SZ_ACT = S * F * 2

def srd(a, s, lo, hi, nbytes, off=0):
    if off:
        a.i(f's_add_u32 s{s}, s{lo}, {off}')
        a.i(f's_addc_u32 s{s+1}, s{hi}, 0')
        a.i(f's_and_b32 s{s+1}, s{s+1}, 0xffff')
    else:
        a.i(f's_mov_b32 s{s}, s{lo}')
        a.i(f's_and_b32 s{s+1}, s{hi}, 0xffff')
    a.i(f's_mov_b32 s{s+2}, {nbytes}')
    a.i(f's_mov_b32 s{s+3}, 0x20000')

def kernel_begin(a, name):
    a.raw(f'.globl {name}')
    a.raw('.p2align 8')
    a.raw(f'.type {name},@function')
    a.raw(f'{name}:')
    a.hist = []

def kd(name, vgpr, sgpr=102, accum=None):
    if accum is None:
        accum = (vgpr + 3) // 4 * 4
    return f'''.p2align 6
.amdhsa_kernel {name}
  .amdhsa_next_free_vgpr {vgpr}
  .amdhsa_next_free_sgpr {sgpr}
  .amdhsa_accum_offset {accum}
  .amdhsa_group_segment_fixed_size 0
  .amdhsa_kernarg_size 88
  .amdhsa_user_sgpr_count 2
  .amdhsa_user_sgpr_kernarg_segment_ptr 1
  .amdhsa_system_sgpr_workgroup_id_x 1
.end_amdhsa_kernel
'''

LOG2E = 1.4426950408889634

def bf16_round(a, dst, src, tmp=None):
    a.i(f'v_cvt_pk_bf16_f32 v{dst}, v{src}, v{src}')
    a.i(f'v_lshlrev_b32 v{dst}, 16, v{dst}')

def bf16_round2(a, d0, d1, s0, s1):
    a.i(f'v_cvt_pk_bf16_f32 v{d1}, v{s0}, v{s1}')
    a.i(f'v_lshlrev_b32 v{d0}, 16, v{d1}')
    a.i(f'v_and_b32 v{d1}, 0xffff0000, v{d1}')

def silu_f32(a, dst, x, t):
    a.i(f'v_mul_f32 v{t}, {fb(-LOG2E)}, v{x}')
    a.i(f'v_exp_f32 v{t}, v{t}')
    a.i(f'v_add_f32 v{t}, 1.0, v{t}')
    a.i(f'v_rcp_f32 v{t}, v{t}')
    a.i(f'v_mul_f32 v{dst}, v{t}, v{x}')
```

```python
import math
from common import fb

R2 = 1.0 / math.sqrt(2.0)
S3 = math.sqrt(3.0) / 2.0

class CX:
    def __init__(self, a, pool):
        self.a = a; self.p = pool
    def new(self):
        return (self.p.get(), self.p.get())
    def free(self, x):
        self.p.put(x[0], x[1])
    def bfly(self, x, y):
        a = self.a
        out = []
        for c in (0, 1):
            t = self.p.get()
            a.i(f'v_add_f32 v{t}, v{x[c]}, v{y[c]}')
            a.i(f'v_sub_f32 v{y[c]}, v{x[c]}, v{y[c]}')
            self.p.put(x[c])
            out.append(t)
        return (out[0], out[1]), y
    def bfly_i(self, x, y, sg):
        a = self.a
        mre = self.p.get(); mim = self.p.get()
        pre = self.p.get(); pim = self.p.get()
        a.i(f'v_add_f32 v{mre}, v{x[0]}, v{y[1]}')
        a.i(f'v_sub_f32 v{mim}, v{x[1]}, v{y[0]}')
        a.i(f'v_sub_f32 v{pre}, v{x[0]}, v{y[1]}')
        a.i(f'v_add_f32 v{pim}, v{x[1]}, v{y[0]}')
        self.free(x); self.free(y)
        m = (mre, mim); p = (pre, pim)
        return (m, p) if sg > 0 else (p, m)
    def dft4(self, y, sg):
        s0, d0 = self.bfly(y[0], y[2])
        s1, d1 = self.bfly(y[1], y[3])
        Y0, Y2 = self.bfly(s0, s1)
        Y1, Y3 = self.bfly_i(d0, d1, sg)
        return [Y0, Y1, Y2, Y3]
    def mul_w8_1(self, b, sg):
        a = self.a
        t0 = self.p.get(); t1 = self.p.get()
        if sg > 0:
            a.i(f'v_add_f32 v{t0}, v{b[0]}, v{b[1]}')
            a.i(f'v_sub_f32 v{t1}, v{b[1]}, v{b[0]}')
        else:
            a.i(f'v_sub_f32 v{t0}, v{b[0]}, v{b[1]}')
            a.i(f'v_add_f32 v{t1}, v{b[0]}, v{b[1]}')
        a.i(f'v_mul_f32 v{t0}, {fb(R2)}, v{t0}')
        a.i(f'v_mul_f32 v{t1}, {fb(R2)}, v{t1}')
        self.free(b)
        return (t0, t1)
    def mul_w8_3(self, b, sg):
        a = self.a
        t0 = self.p.get(); t1 = self.p.get()
        if sg > 0:
            a.i(f'v_sub_f32 v{t0}, v{b[1]}, v{b[0]}')
            a.i(f'v_add_f32 v{t1}, v{b[0]}, v{b[1]}')
            a.i(f'v_mul_f32 v{t0}, {fb(R2)}, v{t0}')
            a.i(f'v_mul_f32 v{t1}, {fb(-R2)}, v{t1}')
        else:
            a.i(f'v_add_f32 v{t0}, v{b[0]}, v{b[1]}')
            a.i(f'v_sub_f32 v{t1}, v{b[0]}, v{b[1]}')
            a.i(f'v_mul_f32 v{t0}, {fb(-R2)}, v{t0}')
            a.i(f'v_mul_f32 v{t1}, {fb(R2)}, v{t1}')
        self.free(b)
        return (t0, t1)
    def dft8(self, x, sg):
        A = [None] * 4; B = [None] * 4
        for k in range(4):
            A[k], B[k] = self.bfly(x[k], x[k + 4])
        E = self.dft4(A, sg)
        b1 = self.mul_w8_1(B[1], sg)
        b3 = self.mul_w8_3(B[3], sg)
        s0, d0 = self.bfly_i(B[0], B[2], sg)
        s1, d1 = self.bfly(b1, b3)
        Y0, Y2 = self.bfly(s0, s1)
        Y1, Y3 = self.bfly_i(d0, d1, sg)
        X = [None] * 8
        X[0], X[2], X[4], X[6] = E
        X[1], X[3], X[5], X[7] = Y0, Y1, Y2, Y3
        return X
    def dft3(self, x, sg):
        a = self.a
        t1, t2 = self.bfly(x[1], x[2])
        X0 = self.new()
        m1 = self.new()
        for c in (0, 1):
            a.i(f'v_add_f32 v{X0[c]}, v{x[0][c]}, v{t1[c]}')
            a.i(f'v_fma_f32 v{m1[c]}, -0.5, v{t1[c]}, v{x[0][c]}')
            a.i(f'v_mul_f32 v{t2[c]}, {fb(S3)}, v{t2[c]}')
        self.free(x[0]); self.free(t1)
        X1, X2 = self.bfly_i(m1, t2, sg)
        return [X0, X1, X2]
    def dft24(self, x, sg):
        Y = []
        for n1 in range(3):
            grp = [x[(8 * n1 + 3 * n2) % 24] for n2 in range(8)]
            Y.append(self.dft8(grp, sg))
        X = [None] * 24
        for k2 in range(8):
            o = self.dft3([Y[0][k2], Y[1][k2], Y[2][k2]], sg)
            for k1 in range(3):
                X[(16 * k1 + 9 * k2) % 24] = o[k1]
        return X
    def cmul_tw(self, x, c, s, sg):
        a = self.a
        t0 = self.p.get(); t1 = self.p.get()
        a.i(f'v_mul_f32 v{t0}, v{x[0]}, v{c}')
        a.i(f'v_mul_f32 v{t1}, v{x[1]}, v{c}')
        if sg > 0:
            a.i(f'v_fmac_f32 v{t0}, v{x[1]}, v{s}')
            a.i(f'v_fma_f32 v{t1}, -v{x[0]}, v{s}, v{t1}')
        else:
            a.i(f'v_fma_f32 v{t0}, -v{x[1]}, v{s}, v{t0}')
            a.i(f'v_fmac_f32 v{t1}, v{x[0]}, v{s}')
        self.free(x)
        return (t0, t1)
    def twiddle_all(self, v, base, sg, mults):
        a = self.a
        pend = None
        for r in range(len(v)):
            if mults[r] == 0:
                continue
            ang = self.p.get(); c = self.p.get(); s = self.p.get()
            if mults[r] == 1:
                a.i(f'v_sin_f32 v{s}, v{base}')
                a.i(f'v_cos_f32 v{c}, v{base}')
            else:
                a.i(f'v_mul_f32 v{ang}, {fb(float(mults[r]))}, v{base}')
                a.i(f'v_sin_f32 v{s}, v{ang}')
                a.i(f'v_cos_f32 v{c}, v{ang}')
            self.p.put(ang)
            if pend is not None:
                pr, pc, ps = pend
                v[pr] = self.cmul_tw(v[pr], pc, ps, sg)
                self.p.put(pc, ps)
            pend = (r, c, s)
        if pend is not None:
            pr, pc, ps = pend
            v[pr] = self.cmul_tw(v[pr], pc, ps, sg)
            self.p.put(pc, ps)
        return v
```

```python
from common import *
from fftlib import CX

NWG = DF
NT = 256
BUF = 20480
LDS_BYTES = 2 * BUF

def fft2048(a, cx, pool, v, sg, bufsel, R):
    def xchg(vals, wbase, wstride, rbase, rstride, buf):
        off = buf * BUF
        for r, c in enumerate(vals):
            a.i(f'ds_write_b32 v{wbase}, v{c[0]} offset:{off + wstride*r}')
            a.i(f'ds_write_b32 v{wbase}, v{c[1]} offset:{off + wstride*r + 4}')
            cx.free(c)
        a.i('s_waitcnt lgkmcnt(0)')
        a.i('s_barrier')
        out = []
        for q in range(8):
            b = pool.get_aligned(2, 2)
            a.i(f'ds_read_b64 v[{b}:{b+1}], v{rbase} offset:{off + rstride*q}')
            out.append((b, b + 1))
        a.i('s_waitcnt lgkmcnt(0)')
        return out
    V = cx.dft8(v, sg)
    v = xchg(V, R['w0'], 8, R['r0'], 2560, bufsel); bufsel ^= 1
    v = cx.twiddle_all(v, R['ang1'], sg, list(range(8)))
    V = cx.dft8(v, sg)
    v = xchg(V, R['w1'], 64, R['r1'], 2304, bufsel); bufsel ^= 1
    v = cx.twiddle_all(v, R['ang2'], sg, list(range(8)))
    V = cx.dft8(v, sg)
    v = xchg(V, R['w2'], 512, R['r2'], 2048, bufsel); bufsel ^= 1
    g0 = [v[0], v[2], v[4], v[6]]
    g1 = [v[1], v[3], v[5], v[7]]
    g0 = cx.twiddle_all(g0, R['ang3a'], sg, [0, 1, 2, 3])
    o0 = cx.dft4(g0, sg)
    g1 = cx.twiddle_all(g1, R['ang3b'], sg, [0, 1, 2, 3])
    o1 = cx.dft4(g1, sg)
    out = [None] * 8
    for r in range(4):
        out[2 * r] = o0[r]; out[2 * r + 1] = o1[r]
    return out, bufsel

def gen(a):
    name = 'col_fft_kernel'
    kernel_begin(a, name)
    a.i(f's_cmp_ge_u32 s2, {NWG}')
    a.i('s_cbranch_scc1 K2_END')
    a.i(f's_load_dwordx2 s[6:7], s[0:1], {KA_WS}')
    a.i('s_waitcnt lgkmcnt(0)')
    srd(a, 8, 6, 7, SZ_XF, WS_XF)
    srd(a, 12, 6, 7, SZ_WT, WS_WT)
    pool = Pool(24, 200)
    cx = CX(a, pool)
    a.i('s_lshl_b32 s20, s2, 14')
    a.i('v_lshlrev_b32 v1, 3, v0')
    a.i('v_add_u32 v1, s20, v1')
    v = []
    for q in range(8):
        b = pool.get_aligned(2, 2)
        a.i(f's_mov_b32 s21, {q*2048}')
        a.i(f'buffer_load_dwordx2 v[{b}:{b+1}], v1, s[8:11], s21 offen')
        v.append((b, b + 1))
    a.i('s_lshl_b32 s20, s2, 13')
    a.i('v_lshlrev_b32 v2, 2, v0')
    a.i('v_add_u32 v2, s20, v2')
    w = []
    for q in range(8):
        r = pool.get()
        a.i(f's_mov_b32 s21, {q*1024}')
        a.i(f'buffer_load_dword v{r}, v2, s[12:15], s21 offen')
        w.append(r)
    R = {}
    def reg(n): R[n] = pool.get(); return R[n]
    a.i(f'v_mul_u32_u24 v{reg("w0")}, 80, v0')
    a.i('v_lshrrev_b32 v3, 3, v0')
    a.i('v_lshlrev_b32 v3, 4, v3')
    a.i(f'v_lshl_add_u32 v{reg("r0")}, v0, 3, v3')
    a.i('v_lshrrev_b32 v3, 3, v0')
    a.i('v_mul_u32_u24 v3, 576, v3')
    a.i('v_and_b32 v4, 7, v0')
    a.i(f'v_lshl_add_u32 v{reg("w1")}, v4, 3, v3')
    a.i('v_lshrrev_b32 v3, 6, v0')
    a.i('v_lshlrev_b32 v3, 6, v3')
    a.i(f'v_lshl_add_u32 v{reg("r1")}, v0, 3, v3')
    a.i('v_lshrrev_b32 v3, 6, v0')
    a.i('v_lshlrev_b32 v3, 12, v3')
    a.i('v_and_b32 v4, 63, v0')
    a.i(f'v_lshl_add_u32 v{reg("w2")}, v4, 3, v3')
    a.i(f'v_lshlrev_b32 v{reg("r2")}, 3, v0')
    a.i('v_and_b32 v3, 7, v0'); a.i('v_cvt_f32_u32 v3, v3')
    a.i(f'v_mul_f32 v{reg("ang1")}, {fb(1.0/64)}, v3')
    a.i('v_and_b32 v3, 63, v0'); a.i('v_cvt_f32_u32 v3, v3')
    a.i(f'v_mul_f32 v{reg("ang2")}, {fb(1.0/512)}, v3')
    a.i('v_cvt_f32_u32 v3, v0')
    a.i(f'v_mul_f32 v{reg("ang3a")}, {fb(1.0/2048)}, v3')
    a.i('v_add_f32 v3, 0x43800000, v3')
    a.i(f'v_mul_f32 v{reg("ang3b")}, {fb(1.0/2048)}, v3')
    a.i('s_waitcnt vmcnt(8)')
    v, bs = fft2048(a, cx, pool, v, +1, 0, R)
    a.i('s_waitcnt vmcnt(0)')
    for q in range(8):
        wr = pool.get(); wi = pool.get()
        a.i(f'v_lshlrev_b32 v{wr}, 16, v{w[q]}')
        a.i(f'v_and_b32 v{wi}, 0xffff0000, v{w[q]}')
        pool.put(w[q])
        x = v[q]
        t0 = pool.get(); t1 = pool.get()
        a.i(f'v_mul_f32 v{t0}, v{x[0]}, v{wr}')
        a.i(f'v_mul_f32 v{t1}, v{x[0]}, v{wi}')
        a.i(f'v_fma_f32 v{t0}, -v{x[1]}, v{wi}, v{t0}')
        a.i(f'v_fmac_f32 v{t1}, v{x[1]}, v{wr}')
        cx.free(x); pool.put(wr, wi)
        v[q] = (t0, t1)
    v, bs = fft2048(a, cx, pool, v, -1, bs, R)
    for q in range(8):
        x = v[q]
        if x[1] != x[0] + 1 or x[0] % 2:
            b = pool.get_aligned(2, 2)
            a.i(f'v_mov_b32 v{b}, v{x[0]}')
            a.i(f'v_mov_b32 v{b+1}, v{x[1]}')
            x = (b, b + 1)
        a.i(f's_mov_b32 s21, {q*2048}')
        a.i(f'buffer_store_dwordx2 v[{x[0]}:{x[1]}], v1, s[8:11], s21 offen')
    a.label('K2_END')
    a.i('s_endpgm')
    return name, max(pool.maxused, 64), NWG, NT, LDS_BYTES
```

```python
from common import *

BM, BN, BK = 128, 144, 64
NB = BN // 16
BPITCH = 288
BUFSZ = 64 * BPITCH + 8 * 128
L_B0 = 0
L_B1 = BUFSZ
L_SCR = 2 * BUFSZ
LDS_BYTES = L_SCR + 1024 + 64

def lds_b_addr(k, ncol_bytes):
    return k * BPITCH + (k >> 3) * 128 + ncol_bytes

class VQ:
    def __init__(self): self.q = []
    def push(self, tag): self.q.append(tag)
    def wait_for(self, tag):
        idx = max(i for i, t in enumerate(self.q) if t == tag)
        return len(self.q) - 1 - idx

def gen_gemm(a, name, nwg, Kfull, KLEN, N, a_off_ws, a_bytes, b_karg, c_off_ws, c_bytes, mode, nsplit, ntn):
    T = KLEN // BK
    kernel_begin(a, name)
    a.i(f's_cmp_ge_u32 s2, {nwg}')
    a.i(f's_cbranch_scc1 {name}_END')
    a.i(f's_load_dwordx2 s[4:5], s[0:1], {b_karg}')
    a.i(f's_load_dwordx2 s[6:7], s[0:1], {KA_WS}')
    if nsplit > 1:
        assert nsplit & (nsplit - 1) == 0
        a.i(f's_and_b32 s20, s2, {nsplit-1}')
        a.i(f's_lshr_b32 s21, s2, {nsplit.bit_length()-1}')
    else:
        a.i('s_mov_b32 s20, 0')
        a.i('s_mov_b32 s21, s2')
    assert ntn & (ntn - 1) == 0
    a.i(f's_and_b32 s22, s21, {ntn-1}')
    a.i(f's_lshr_b32 s23, s21, {ntn.bit_length()-1}')
    a.i('s_waitcnt lgkmcnt(0)')
    srd(a, 8, 6, 7, a_bytes, a_off_ws)
    srd(a, 12, 4, 5, Kfull * N * 2)
    srd(a, 16, 6, 7, c_bytes, c_off_ws)
    ACC = 8
    AST = 80
    BST = 128
    BFR = 168
    V_A0, V_A1 = 240, 241
    V_BG = 242
    V_BL = 247
    V_TR = 252
    V_C = 253
    NV = 256
    a.i('v_and_b32 v1, 63, v0')
    a.i('v_lshrrev_b32 v2, 6, v0')
    a.i('v_and_b32 v3, 15, v1')
    a.i('v_lshrrev_b32 v4, 4, v1')
    a.i('s_lshl_b32 s24, s23, 7')
    a.i('v_lshlrev_b32 v5, 5, v2')
    a.i('v_add3_u32 v5, v5, s24, v3')
    a.i(f's_mov_b32 s25, {Kfull*2}')
    a.i('v_mul_lo_u32 v5, v5, s25')
    a.i('v_lshlrev_b32 v6, 4, v4')
    a.i(f's_mul_i32 s26, s20, {KLEN*2}')
    a.i(f'v_add3_u32 v{V_A0}, v5, v6, s26')
    a.i(f'v_add_u32 v{V_A1}, {16*Kfull*2}, v{V_A0}')
    a.i(f's_mul_i32 s27, s20, {KLEN*N*2}')
    a.i(f's_mul_i32 s28, s22, {BN*2}')
    a.i('s_add_u32 s27, s27, s28')
    for i in range(5):
        a.i(f'v_add_u32 v5, {i*256}, v0')
        a.i('v_mul_u32_u24 v6, 3641, v5')
        a.i('v_lshrrev_b32 v6, 16, v6')
        a.i('v_mul_u32_u24 v7, 18, v6')
        a.i('v_sub_u32 v7, v5, v7')
        a.i(f's_mov_b32 s29, {N*2}')
        a.i(f'v_mul_lo_u32 v{V_BG+i}, v6, s29')
        a.i(f'v_lshlrev_b32 v5, 4, v7')
        a.i(f'v_add3_u32 v{V_BG+i}, v{V_BG+i}, v5, s27')
        a.i(f'v_mul_u32_u24 v{V_BL+i}, {BPITCH}, v6')
        a.i('v_lshrrev_b32 v6, 3, v6')
        a.i('v_lshlrev_b32 v6, 7, v6')
        a.i(f'v_add3_u32 v{V_BL+i}, v{V_BL+i}, v6, v5')
        if i == 4:
            a.i(f'v_add_u32 v5, {i*256}, v0')
            a.i('v_cmp_gt_u32 vcc, 1152, v5')
            a.i(f'v_mov_b32 v6, 0x7ffffff0')
            a.i(f'v_cndmask_b32 v{V_BG+i}, v6, v{V_BG+i}, vcc')
            a.i(f'v_lshlrev_b32 v6, 4, v1')
            a.i(f'v_add_u32 v6, {L_SCR}, v6')
            a.i(f'v_cndmask_b32 v{V_BL+i}, v6, v{V_BL+i}, vcc')
    a.i('v_lshrrev_b32 v5, 2, v3')
    a.i('v_lshlrev_b32 v6, 3, v4')
    a.i('v_add_u32 v5, v5, v6')
    a.i(f'v_mul_u32_u24 v5, {BPITCH}, v5')
    a.i('v_lshlrev_b32 v6, 7, v4')
    a.i('v_and_b32 v7, 3, v3')
    a.i('v_lshlrev_b32 v7, 3, v7')
    a.i(f'v_add3_u32 v{V_TR}, v5, v6, v7')
    vq = VQ()
    def ldA(t):
        st = AST + (t % 3) * 16
        for kk in range(2):
            for mb in range(2):
                r = st + (kk * 2 + mb) * 4
                off = t * 128 + kk * 64
                a.i(f'buffer_load_dwordx4 v[{r}:{r+3}], v{V_A0 if mb == 0 else V_A1}, s[8:11], 0 offen offset:{off}')
                vq.push(('A', t))
    def ldB(t):
        st = BST + (t % 2) * 20
        a.i(f's_mov_b32 s30, {t*BK*N*2}')
        for i in range(5):
            r = st + 4 * i
            a.i(f'buffer_load_dwordx4 v[{r}:{r+3}], v{V_BG+i}, s[12:15], s30 offen')
            vq.push(('B', t))
    def stB(t):
        st = BST + (t % 2) * 20
        n = vq.wait_for(('B', t))
        a.i(f's_waitcnt vmcnt({n})')
        base = L_B0 if t % 2 == 0 else L_B1
        for i in range(5):
            r = st + 4 * i
            a.i(f'ds_write_b128 v{V_BL+i}, v[{r}:{r+3}] offset:{base}')
    def comp(t):
        base = L_B0 if t % 2 == 0 else L_B1
        st = AST + (t % 3) * 16
        for kk in range(2):
            for nb in range(NB):
                r = BFR + kk * 36 + nb * 4
                off = base + kk * (32 * BPITCH + 4 * 128) + nb * 32
                a.i(f'ds_read_b64_tr_b16 v[{r}:{r+1}], v{V_TR} offset:{off}')
                a.i(f'ds_read_b64_tr_b16 v[{r+2}:{r+3}], v{V_TR} offset:{off + 4*BPITCH}')
        n = vq.wait_for(('A', t))
        a.i(f's_waitcnt vmcnt({n})')
        for kk in range(2):
            for nb in range(NB):
                idx = kk * 18 + nb * 2 + 1
                a.i(f's_waitcnt lgkmcnt({min(15, 35 - idx)})')
                bf = BFR + kk * 36 + nb * 4
                for mb in range(2):
                    af = st + (kk * 2 + mb) * 4
                    acc = ACC + (mb * NB + nb) * 4
                    c = '0' if (t == 0 and kk == 0) else f'v[{acc}:{acc+3}]'
                    a.i(f'v_mfma_f32_16x16x32_bf16 v[{acc}:{acc+3}], v[{bf}:{bf+3}], v[{af}:{af+3}], {c}')
    ldB(0); ldA(0)
    if T > 1:
        ldB(1); ldA(1)
    for t in range(T):
        stB(t)
        if t + 2 < T:
            ldB(t + 2)
        a.i('s_waitcnt lgkmcnt(0)')
        a.i('s_barrier')
        if t + 2 < T:
            ldA(t + 2)
        comp(t)
    esz = 2 if mode == 'silu' else 4
    a.i('v_lshlrev_b32 v5, 5, v2')
    a.i('v_add3_u32 v5, v5, s24, v3')
    a.i(f's_mov_b32 s25, {N*esz}')
    a.i('v_mul_lo_u32 v5, v5, s25')
    a.i(f'v_lshlrev_b32 v6, {2 + (1 if esz == 2 else 2)}, v4')
    a.i(f's_mul_i32 s28, s22, {BN*esz}')
    a.i(f'v_add3_u32 v{V_C}, v5, v6, s28')
    if mode == 'part':
        a.i(f's_mul_i32 s31, s20, {S*N*4}')
        a.i(f'v_add_u32 v{V_C}, s31, v{V_C}')
    a.i(f's_mov_b32 s29, {16*N*esz}')
    for mb in range(2):
        for nb in range(NB):
            acc = ACC + (mb * NB + nb) * 4
            so = 's29' if mb else '0'
            if mode == 'part':
                a.i(f'buffer_store_dwordx4 v[{acc}:{acc+3}], v{V_C}, s[16:19], {so} offen offset:{nb*64}')
            else:
                t0, t1 = 1, 4
                bf16_round2(a, acc, acc + 1, acc, acc + 1)
                bf16_round2(a, acc + 2, acc + 3, acc + 2, acc + 3)
                for q in range(4):
                    silu_f32(a, acc + q, acc + q + 0, 5 + (q & 1)) if False else None
                for q in range(4):
                    tq = 5 + (q & 1)
                    a.i(f'v_mul_f32 v{tq}, {fb(-LOG2E)}, v{acc+q}')
                    a.i(f'v_exp_f32 v{tq}, v{tq}')
                    a.i(f'v_add_f32 v{tq}, 1.0, v{tq}')
                    a.i(f'v_rcp_f32 v{tq}, v{tq}')
                    a.i(f'v_mul_f32 v{acc+q}, v{tq}, v{acc+q}')
                a.i(f'v_cvt_pk_bf16_f32 v{acc}, v{acc}, v{acc+1}')
                a.i(f'v_cvt_pk_bf16_f32 v{acc+1}, v{acc+2}, v{acc+3}')
                a.i(f'buffer_store_dwordx2 v[{acc}:{acc+1}], v{V_C}, s[16:19], {so} offen offset:{nb*32}')
    a.label(f'{name}_END')
    a.i('s_endpgm')
    return name, NV, nwg, 256, LDS_BYTES

def gen_gemm1(a):
    return gen_gemm(a, 'gemm1_kernel', 512, D, D, F, WS_H2, SZ_X2, KA_W1, WS_ACT, SZ_ACT, 'silu', 1, 32)

SPLIT2 = 8
def gen_gemm2(a):
    return gen_gemm(a, 'gemm2_kernel', 16 * 4 * SPLIT2, F, F // SPLIT2, D, WS_ACT, SZ_ACT, KA_W2, WS_PART, SPLIT2 * S * D * 4, 'part', SPLIT2, 4)

def gen_final(a):
    name = 'final_kernel'
    nthr = S * D // 8
    nwg = nthr // 256
    kernel_begin(a, name)
    a.i(f's_cmp_ge_u32 s2, {nwg}')
    a.i('s_cbranch_scc1 FIN_END')
    a.i(f's_load_dwordx2 s[4:5], s[0:1], {KA_OUT}')
    a.i(f's_load_dwordx2 s[6:7], s[0:1], {KA_WS}')
    a.i('s_waitcnt lgkmcnt(0)')
    srd(a, 8, 6, 7, SPLIT2 * S * D * 4, WS_PART)
    srd(a, 12, 6, 7, SZ_X2, WS_X2)
    srd(a, 16, 4, 5, S * D * 2)
    srd(a, 20, 6, 7, SZ_MOD, WS_MOD)
    a.i('s_lshl_b32 s3, s2, 8')
    a.i('v_add_u32 v1, s3, v0')
    a.i('v_lshlrev_b32 v2, 5, v1')
    a.i('v_lshlrev_b32 v3, 4, v1')
    for s in range(SPLIT2):
        a.i(f's_mov_b32 s24, {s*S*D*4}')
        a.i(f'buffer_load_dwordx4 v[{8+8*s}:{11+8*s}], v2, s[8:11], s24 offen')
        a.i(f'buffer_load_dwordx4 v[{12+8*s}:{15+8*s}], v2, s[8:11], s24 offen offset:16')
    XO = 8 + 8 * SPLIT2
    a.i(f'buffer_load_dwordx4 v[{XO}:{XO+3}], v3, s[12:15], 0 offen')
    a.i('v_mul_hi_u32 v4, v1, s25') if False else None
    a.i(f's_mov_b32 s25, {0x38E38E39}')
    a.i('v_mul_hi_u32 v4, v1, s25')
    a.i('v_lshrrev_b32 v4, 4, v4')
    a.i('v_mul_u32_u24 v4, 72, v4')
    a.i('v_sub_u32 v4, v1, v4')
    a.i('v_lshlrev_b32 v4, 5, v4')
    GB = XO + 4
    a.i(f's_mov_b32 s26, {5*D*4}')
    a.i(f'buffer_load_dwordx4 v[{GB}:{GB+3}], v4, s[20:23], s26 offen')
    a.i(f'buffer_load_dwordx4 v[{GB+4}:{GB+7}], v4, s[20:23], s26 offen offset:16')
    a.i('s_waitcnt vmcnt(0)')
    for e in range(8):
        for s in range(1, SPLIT2):
            a.i(f'v_add_f32 v{8+e}, v{8+e}, v{8+8*s+e}')
    for e in range(0, 8, 2):
        bf16_round2(a, 8 + e, 9 + e, 8 + e, 9 + e)
        a.i(f'v_mul_f32 v{8+e}, v{8+e}, v{GB+e}')
        a.i(f'v_mul_f32 v{9+e}, v{9+e}, v{GB+e+1}')
        bf16_round2(a, 8 + e, 9 + e, 8 + e, 9 + e)
        a.i(f'v_lshlrev_b32 v5, 16, v{XO+e//2}')
        a.i(f'v_and_b32 v6, 0xffff0000, v{XO+e//2}')
        a.i(f'v_add_f32 v{8+e}, v5, v{8+e}')
        a.i(f'v_add_f32 v{9+e}, v6, v{9+e}')
        a.i(f'v_cvt_pk_bf16_f32 v{XO+e//2}, v{8+e}, v{9+e}')
    a.i(f'buffer_store_dwordx4 v[{XO}:{XO+3}], v3, s[16:19], 0 offen')
    a.label('FIN_END')
    a.i('s_endpgm')
    return name, GB + 8, nwg, 256, 0
```

```python
from common import *

NGEMV = 108
NTR_U, NTR_K = 32, 5
NWG = NGEMV + NTR_U * NTR_K

def gen(a):
    name = 'prep_kernel'
    kernel_begin(a, name)
    a.i(f's_cmp_ge_u32 s2, {NWG}')
    a.i('s_cbranch_scc1 PREP_END')
    a.i(f's_cmp_ge_u32 s2, {NGEMV}')
    a.i('s_cbranch_scc1 PREP_TR')
    a.i(f's_load_dwordx2 s[4:5], s[0:1], {KA_C}')
    a.i(f's_load_dwordx2 s[6:7], s[0:1], {KA_WMOD}')
    a.i(f's_load_dwordx2 s[8:9], s[0:1], {KA_WS}')
    a.i('s_waitcnt lgkmcnt(0)')
    srd(a, 12, 4, 5, D * 2)
    srd(a, 16, 6, 7, D * 6 * D * 2)
    srd(a, 20, 8, 9, SZ_MOD, WS_MOD)
    for r in range(3):
        a.i(f'v_add_u32 v1, {r*256}, v0')
        a.i('v_lshlrev_b32 v2, 1, v1')
        a.i('buffer_load_ushort v3, v2, s[12:15], 0 offen')
        a.i('s_waitcnt vmcnt(0)')
        a.i('v_lshlrev_b32 v3, 16, v3')
        silu_f32(a, 4, 3, 5)
        bf16_round(a, 4, 4)
        a.i('v_lshlrev_b32 v2, 2, v1')
        a.i('ds_write_b32 v2, v4')
    a.i('s_waitcnt lgkmcnt(0)')
    a.i('s_barrier')
    a.i('v_lshrrev_b32 v1, 4, v0')
    a.i('v_and_b32 v2, 15, v0')
    a.i(f's_mov_b32 s24, {36*3456*2}')
    a.i('v_mul_lo_u32 v3, v1, s24')
    a.i('v_lshlrev_b32 v4, 2, v2')
    a.i('s_lshl_b32 s25, s2, 6')
    a.i('v_add3_u32 v3, v3, v4, s25')
    for i in range(36):
        a.i(f's_mov_b32 s26, {i*3456*2}')
        a.i(f'buffer_load_dword v{16+i}, v3, s[16:19], s26 offen')
    a.i(f'v_mul_u32_u24 v5, {36*4}, v1')
    for q in range(9):
        a.i(f'ds_read_b128 v[{52+4*q}:{55+4*q}], v5 offset:{q*16}')
    a.i('v_mov_b32 v6, 0')
    a.i('v_mov_b32 v7, 0')
    a.i('s_waitcnt lgkmcnt(0)')
    for i in range(36):
        a.i(f's_waitcnt vmcnt({35-i})')
        a.i(f'v_lshlrev_b32 v8, 16, v{16+i}')
        a.i(f'v_and_b32 v9, 0xffff0000, v{16+i}')
        a.i(f'v_fmac_f32 v6, v{52+i}, v8')
        a.i(f'v_fmac_f32 v7, v{52+i}, v9')
    a.i('s_barrier')
    a.i('v_lshlrev_b32 v10, 7, v1')
    a.i('v_lshlrev_b32 v11, 3, v2')
    a.i('v_add_u32 v10, v10, v11')
    a.i('ds_write_b64 v10, v[6:7] offset:4096')
    a.i('s_waitcnt lgkmcnt(0)')
    a.i('s_barrier')
    a.i('v_readfirstlane_b32 s27, v0')
    a.i('s_cmp_lg_u32 s27, 0')
    a.i('s_cbranch_scc1 PREP_END')
    a.i('v_and_b32 v12, 31, v0')
    a.i('v_lshlrev_b32 v12, 2, v12')
    for kg in range(16):
        a.i(f'ds_read_b32 v{16+kg}, v12 offset:{4096+kg*128}')
    a.i('s_waitcnt lgkmcnt(0)')
    a.i('v_mov_b32 v13, v16')
    for kg in range(1, 16):
        a.i(f'v_add_f32 v13, v13, v{16+kg}')
    bf16_round(a, 13, 13)
    a.i('s_sub_u32 s28, s2, 18')
    a.i('s_cmp_lt_u32 s28, 18')
    a.i('s_cselect_b32 s29, 1, 0')
    a.i('s_sub_u32 s28, s2, 72')
    a.i('s_cmp_lt_u32 s28, 18')
    a.i('s_cselect_b32 s30, 1, 0')
    a.i('s_or_b32 s29, s29, s30')
    a.i('s_cmp_eq_u32 s29, 1')
    a.i('s_cselect_b32 s29, 0x3f800000, 0')
    a.i('v_add_f32 v13, s29, v13')
    bf16_round(a, 13, 13)
    a.i('v_cmp_gt_u32 vcc, 32, v0')
    a.i('s_and_saveexec_b64 s[32:33], vcc')
    a.i('s_lshl_b32 s25, s2, 7')
    a.i('v_lshlrev_b32 v12, 2, v0')
    a.i('v_add_u32 v12, s25, v12')
    a.i('buffer_store_dword v13, v12, s[20:23], 0 offen')
    a.i('s_endpgm')

    a.label('PREP_TR')
    a.fence(0)
    a.i(f's_load_dwordx2 s[4:5], s[0:1], {KA_WR}')
    a.i(f's_load_dwordx2 s[6:7], s[0:1], {KA_WI}')
    a.i(f's_load_dwordx2 s[8:9], s[0:1], {KA_WS}')
    a.i('s_waitcnt lgkmcnt(0)')
    srd(a, 12, 4, 5, S * DF * 2)
    srd(a, 16, 6, 7, S * DF * 2)
    srd(a, 20, 8, 9, SZ_WT, WS_WT)
    a.i(f's_sub_u32 s24, s2, {NGEMV}')
    a.i('s_and_b32 s25, s24, 31')
    a.i('s_lshr_b32 s26, s24, 5')
    a.i('v_and_b32 v1, 63, v0')
    a.i('v_lshrrev_b32 v2, 6, v0')
    a.i('s_lshl_b32 s27, s25, 6')
    a.i('v_add_u32 v3, s27, v2')
    a.i(f'v_mul_u32_u24 v3, {DF}, v3')
    a.i('s_lshl_b32 s28, s26, 6')
    a.i('v_add3_u32 v3, v3, s28, v1')
    a.i('v_lshlrev_b32 v3, 1, v3')
    for i in range(16):
        a.i(f's_mov_b32 s29, {i*4*DF*2}')
        a.i(f'buffer_load_ushort v{16+i}, v3, s[12:15], s29 offen')
        a.i(f'buffer_load_ushort v{32+i}, v3, s[16:19], s29 offen')
    a.i(f'v_mul_u32_u24 v4, 65, v1')
    a.i('v_add_u32 v4, v4, v2')
    a.i('v_lshlrev_b32 v4, 2, v4')
    for i in range(16):
        a.i(f's_waitcnt vmcnt({2*(15-i)})')
        a.i(f'v_lshlrev_b32 v{32+i}, 16, v{32+i}')
        a.i(f'v_or_b32 v{16+i}, v{16+i}, v{32+i}')
        a.i(f'ds_write_b32 v4, v{16+i} offset:{i*16}')
    a.i('s_waitcnt lgkmcnt(0)')
    a.i('s_barrier')
    a.i(f'v_mul_u32_u24 v5, 65, v2')
    a.i('v_add_u32 v5, v5, v1')
    a.i('v_lshlrev_b32 v5, 2, v5')
    for i in range(16):
        a.i(f'ds_read_b32 v{16+i}, v5 offset:{i*4*65*4}')
    a.i('v_add_u32 v6, s28, v2')
    a.i('v_lshlrev_b32 v6, 11, v6')
    a.i('v_add3_u32 v6, v6, s27, v1')
    a.i('v_lshlrev_b32 v6, 2, v6')
    for i in range(16):
        a.i(f's_waitcnt lgkmcnt({15-i})')
        a.i(f's_mov_b32 s29, {i*4*2048*4}')
        a.i(f'buffer_store_dword v{16+i}, v6, s[20:23], s29 offen')
    a.label('PREP_END')
    a.i('s_endpgm')
    return name, 96, NWG, 256, 4096 + 16 * 128 + 64 * 65 * 4
```

```python
from common import *
from fftlib import CX

ROWS_WG = 16
NWG = S // ROWS_WG
NT = 192
HP_PITCH = 2320
L_RED = 0
L_EX = 1536
FP = 4800
L_HP = L_EX + 8 * FP
L_EX2 = L_HP
FP2 = 2560
LDS_BYTES = L_HP + 16 * HP_PITCH + 64

def row_thread_decomp(a, vrow, vch, tmp):
    a.i(f'v_mul_u32_u24 v{tmp}, 2731, v0')
    a.i(f'v_lshrrev_b32 v{vrow}, 15, v{tmp}')
    a.i(f'v_mul_u32_u24 v{tmp}, 12, v{vrow}')
    a.i(f'v_sub_u32 v{vch}, v0, v{tmp}')

def row_reduce(a, val, vrow, vt0, red_off, dst, tmps):
    a.i(f'v_lshlrev_b32 v{vt0}, 2, v0')
    a.i(f'ds_write_b32 v{vt0}, v{val} offset:{red_off}')
    a.i('s_waitcnt lgkmcnt(0)')
    a.i('s_barrier')
    a.i(f'v_mul_u32_u24 v{vt0}, 48, v{vrow}')
    for q in range(3):
        a.i(f'ds_read_b128 v[{tmps+4*q}:{tmps+4*q+3}], v{vt0} offset:{red_off + 16*q}')
    a.i('s_waitcnt lgkmcnt(0)')
    a.i(f'v_add_f32 v{dst}, v{tmps}, v{tmps+1}')
    for q in range(2, 12):
        a.i(f'v_add_f32 v{dst}, v{dst}, v{tmps+q}')

def ln_stats_and_norm(a, xs, vrow, pool_tmp, red_base, eps_tmp):
    T = pool_tmp
    acc = T['acc']
    for k in range(4):
        a.i(f'v_add_f32 v{acc+k}, v{xs[k]}, v{xs[k+4]}')
    for i in range(8, 48):
        a.i(f'v_add_f32 v{acc+(i&3)}, v{acc+(i&3)}, v{xs[i]}')
    a.i(f'v_add_f32 v{acc}, v{acc}, v{acc+1}')
    a.i(f'v_add_f32 v{acc+2}, v{acc+2}, v{acc+3}')
    a.i(f'v_add_f32 v{acc}, v{acc}, v{acc+2}')
    row_reduce(a, acc, vrow, T['t0'], red_base, T['mean'], T['rd'])
    a.i(f'v_mul_f32 v{T["mean"]}, {fb(1.0/576)}, v{T["mean"]}')
    for k in range(4):
        a.i(f'v_sub_f32 v{T["t1"]}, v{xs[k]}, v{T["mean"]}')
        a.i(f'v_mul_f32 v{acc+k}, v{T["t1"]}, v{T["t1"]}')
    for i in range(4, 48):
        a.i(f'v_sub_f32 v{T["t1"]}, v{xs[i]}, v{T["mean"]}')
        a.i(f'v_fmac_f32 v{acc+(i&3)}, v{T["t1"]}, v{T["t1"]}')
    a.i(f'v_add_f32 v{acc}, v{acc}, v{acc+1}')
    a.i(f'v_add_f32 v{acc+2}, v{acc+2}, v{acc+3}')
    a.i(f'v_add_f32 v{acc}, v{acc}, v{acc+2}')
    row_reduce(a, acc, vrow, T['t0'], red_base + NT * 4, T['rinv'], T['rd'])
    v = T['rinv']
    a.i(f'v_mul_f32 v{v}, {fb(1.0/576)}, v{v}')
    bf16_round(a, v, v)
    a.i(f'v_add_f32 v{v}, {fb(1e-5)}, v{v}')
    bf16_round(a, v, v)
    a.i(f'v_sqrt_f32 v{v}, v{v}')
    bf16_round(a, v, v)
    a.i(f'v_rcp_f32 v{v}, v{v}')
    bf16_round(a, T['mean'], T['mean'])
    return T['mean'], v

def ln_apply(a, xs, vm, vr, ca1, sa):
    for i in range(0, 48, 2):
        x0, x1 = xs[i], xs[i + 1]
        a.i(f'v_sub_f32 v{x0}, v{x0}, v{vm}')
        a.i(f'v_sub_f32 v{x1}, v{x1}, v{vm}')
        bf16_round2(a, x0, x1, x0, x1)
        a.i(f'v_mul_f32 v{x0}, v{x0}, v{vr}')
        a.i(f'v_mul_f32 v{x1}, v{x1}, v{vr}')
        bf16_round2(a, x0, x1, x0, x1)
        a.i(f'v_mul_f32 v{x0}, v{x0}, v{ca1[i]}')
        a.i(f'v_mul_f32 v{x1}, v{x1}, v{ca1[i+1]}')
        bf16_round2(a, x0, x1, x0, x1)
        a.i(f'v_add_f32 v{x0}, v{x0}, v{sa[i]}')
        a.i(f'v_add_f32 v{x1}, v{x1}, v{sa[i+1]}')
        bf16_round2(a, x0, x1, x0, x1)

def gen_ln_rfft(a):
    name = 'ln_rfft_kernel'
    kernel_begin(a, name)
    a.i(f's_cmp_ge_u32 s2, {NWG}')
    a.i('s_cbranch_scc1 K1_END')
    a.i(f's_load_dwordx2 s[4:5], s[0:1], {KA_X}')
    a.i(f's_load_dwordx2 s[6:7], s[0:1], {KA_WS}')
    a.i('s_waitcnt lgkmcnt(0)')
    srd(a, 8, 4, 5, S * D * 2)
    srd(a, 12, 6, 7, SZ_MOD, WS_MOD)
    srd(a, 16, 6, 7, SZ_XF, WS_XF)
    a.i('s_lshl_b32 s20, s2, 4')
    vrow, vch, vt = 1, 2, 3
    row_thread_decomp(a, vrow, vch, vt)
    a.i(f'v_add_u32 v4, s20, v{vrow}')
    a.i(f'v_mul_u32_u24 v4, {D*2}, v4')
    a.i(f'v_mul_u32_u24 v5, 96, v{vch}')
    a.i('v_add_u32 v4, v4, v5')
    XRAW = 8
    for q in range(6):
        a.i(f'buffer_load_dwordx4 v[{XRAW+4*q}:{XRAW+4*q+3}], v4, s[8:11], 0 offen offset:{16*q}')
    a.i(f'v_mul_u32_u24 v5, 192, v{vch}')
    CA = 128; SA = 176
    for q in range(12):
        a.i(f'buffer_load_dwordx4 v[{SA+4*q}:{SA+4*q+3}], v5, s[12:15], 0 offen offset:{16*q}')
    for q in range(12):
        a.i(f'buffer_load_dwordx4 v[{CA+4*q}:{CA+4*q+3}], v5, s[12:15], 0 offen offset:{D*4 + 16*q}')
    XS = list(range(32, 80))
    a.i('s_waitcnt vmcnt(24)')
    for q in range(24):
        a.i(f'v_lshlrev_b32 v{XS[2*q]}, 16, v{XRAW+q}')
        a.i(f'v_and_b32 v{XS[2*q+1]}, 0xffff0000, v{XRAW+q}')
    T = dict(t0=6, t1=7, acc=80, rd=84, mean=96, rinv=97)
    vm, vr = ln_stats_and_norm(a, XS, vrow, T, L_RED, None)
    a.i('s_waitcnt vmcnt(0)')
    ln_apply(a, XS, vm, vr, list(range(CA, CA + 48)), list(range(SA, SA + 48)))
    a.i(f'v_and_b32 v6, 1, v{vrow}')
    a.i('v_lshlrev_b32 v6, 3, v6')
    a.i(f'v_lshrrev_b32 v7, 1, v{vrow}')
    a.i('v_add_u32 v6, v6, v7')
    a.i(f'v_mul_u32_u24 v6, {HP_PITCH}, v6')
    a.i('v_add_u32 v6, v6, v5')
    for q in range(12):
        a.i(f'ds_write_b128 v6, v[{XS[4*q]}:{XS[4*q]+3}] offset:{L_HP + 16*q}')
    a.i('s_waitcnt lgkmcnt(0)')
    a.i('s_barrier')
    vj, vf = 1, 2
    a.i(f'v_lshrrev_b32 v{vj}, 3, v0')
    a.i(f'v_and_b32 v{vf}, 7, v0')
    pool = Pool(8, 250)
    cx = CX(a, pool)
    va = 3
    a.i(f'v_mul_u32_u24 v{va}, {HP_PITCH}, v{vf}')
    a.i(f'v_lshlrev_b32 v4, 2, v{vj}')
    a.i(f'v_add_u32 v{va}, v{va}, v4')
    z = []
    for r in range(24):
        c = cx.new()
        a.i(f'ds_read_b32 v{c[0]}, v{va} offset:{L_HP + 96*r}')
        a.i(f'ds_read_b32 v{c[1]}, v{va} offset:{L_HP + 8*HP_PITCH + 96*r}')
        z.append(c)
    a.i('s_waitcnt lgkmcnt(0)')
    Z = cx.dft24(z, +1)
    vw = 4
    a.i(f'v_mul_u32_u24 v{vw}, {FP}, v{vf}')
    a.i(f'v_mul_u32_u24 v5, 192, v{vj}')
    a.i(f'v_add_u32 v{vw}, v{vw}, v5')
    for q in range(24):
        c = Z[q]
        a.i(f'ds_write_b32 v{vw}, v{c[0]} offset:{L_EX + 8*q}')
        a.i(f'ds_write_b32 v{vw}, v{c[1]} offset:{L_EX + 8*q + 4}')
        cx.free(c)
    a.i('s_waitcnt lgkmcnt(0)')
    a.i('s_barrier')
    vr2 = 5
    a.i(f'v_mul_u32_u24 v{vr2}, {FP}, v{vf}')
    a.i(f'v_lshlrev_b32 v6, 3, v{vj}')
    a.i(f'v_add_u32 v{vr2}, v{vr2}, v6')
    z = []
    for r in range(24):
        base = pool.get_aligned(2, 2)
        a.i(f'ds_read_b64 v[{base}:{base+1}], v{vr2} offset:{L_EX + 192*r}')
        z.append((base, base + 1))
    vb = 6
    a.i(f'v_cvt_f32_u32 v{vb}, v{vj}')
    a.i(f'v_mul_f32 v{vb}, {fb(1.0/576)}, v{vb}')
    a.i('s_waitcnt lgkmcnt(0)')
    z = cx.twiddle_all(z, vb, +1, list(range(24)))
    Z = cx.dft24(z, +1)
    a.i(f'v_mul_u32_u24 v{vw}, {FP2}, v{vf}')
    a.i(f'v_lshlrev_b32 v5, 3, v{vj}')
    a.i(f'v_add_u32 v{vw}, v{vw}, v5')
    for q in list(range(12, 24)) + [24]:
        c = Z[q % 24]
        a.i(f'ds_write_b32 v{vw}, v{c[0]} offset:{L_EX2 + 192*(q-12)}')
        a.i(f'ds_write_b32 v{vw}, v{c[1]} offset:{L_EX2 + 192*(q-12) + 4}')
    for q in range(13, 24):
        cx.free(Z[q])
    a.i('s_waitcnt lgkmcnt(0)')
    a.i('s_barrier')
    vm2 = 5
    a.i(f'v_mul_u32_u24 v{vm2}, {FP2}, v{vf}')
    a.i(f'v_lshlrev_b32 v6, 3, v{vj}')
    a.i(f'v_sub_u32 v{vm2}, v{vm2}, v6')
    a.i(f'v_add_u32 v{vm2}, {L_EX2}, v{vm2}')
    M = []
    for i in range(13):
        base = pool.get_aligned(2, 2)
        a.i(f'ds_read_b64 v[{base}:{base+1}], v{vm2} offset:{192*(12-i)}')
        M.append((base, base + 1))
    vs = 4
    a.i(f'v_lshlrev_b32 v{vs}, 14, v{vj}')
    a.i(f'v_lshlrev_b32 v6, 4, v{vf}')
    a.i(f'v_add_u32 v{vs}, v{vs}, v6')
    a.i('s_lshl_b32 s21, s20, 3')
    a.i(f'v_add_u32 v{vs}, s21, v{vs}')
    for i in range(13):
        a.i(f's_waitcnt lgkmcnt({12-i})')
        zk = Z[i]; zm = M[i]
        o = pool.get_aligned(4, 4)
        a.i(f'v_add_f32 v{o}, v{zk[0]}, v{zm[0]}')
        a.i(f'v_sub_f32 v{o+1}, v{zk[1]}, v{zm[1]}')
        a.i(f'v_add_f32 v{o+2}, v{zk[1]}, v{zm[1]}')
        a.i(f'v_sub_f32 v{o+3}, v{zm[0]}, v{zk[0]}')
        a.i(f's_mov_b32 s22, {i*24*16384}')
        a.i(f'buffer_store_dwordx4 v[{o}:{o+3}], v{vs}, s[16:19], s22 offen')
        cx.free(zk); cx.free(zm)
    a.label('K1_END')
    a.i('s_endpgm')
    return name, max(pool.maxused, 224), NWG, NT, LDS_BYTES


def gen_irfft_ln(a):
    name = 'irfft_ln_kernel'
    kernel_begin(a, name)
    a.i(f's_cmp_ge_u32 s2, {NWG}')
    a.i('s_cbranch_scc1 K3_END')
    a.i(f's_load_dwordx2 s[4:5], s[0:1], {KA_X}')
    a.i(f's_load_dwordx2 s[6:7], s[0:1], {KA_WS}')
    a.i('s_waitcnt lgkmcnt(0)')
    srd(a, 8, 4, 5, S * D * 2)
    srd(a, 12, 6, 7, SZ_MOD, WS_MOD)
    srd(a, 16, 6, 7, SZ_XF, WS_XF)
    srd(a, 24, 6, 7, SZ_X2, WS_X2)
    srd(a, 28, 6, 7, SZ_X2, WS_H2)
    a.i('s_lshl_b32 s20, s2, 4')
    vj, vf = 1, 2
    a.i(f'v_lshrrev_b32 v{vj}, 3, v0')
    a.i(f'v_and_b32 v{vf}, 7, v0')
    pool = Pool(8, 250)
    cx = CX(a, pool)
    vs = 4
    a.i(f'v_lshlrev_b32 v{vs}, 14, v{vj}')
    a.i(f'v_lshlrev_b32 v6, 4, v{vf}')
    a.i(f'v_add_u32 v{vs}, v{vs}, v6')
    a.i('s_lshl_b32 s21, s20, 3')
    a.i(f'v_add_u32 v{vs}, s21, v{vs}')
    L = []
    for i in range(13):
        o = pool.get_aligned(4, 4)
        a.i(f's_mov_b32 s22, {i*24*16384}')
        a.i(f'buffer_load_dwordx4 v[{o}:{o+3}], v{vs}, s[16:19], s22 offen')
        L.append(o)
    a.i(f'v_cmp_eq_u32 vcc, 0, v{vj}')
    vw = 5
    a.i(f'v_mul_u32_u24 v{vw}, {FP2}, v{vf}')
    a.i(f'v_lshlrev_b32 v6, 3, v{vj}')
    a.i(f'v_sub_u32 v{vw}, v{vw}, v6')
    a.i(f'v_add_u32 v{vw}, {L_EX2}, v{vw}')
    own = []
    for i in range(13):
        o = L[i]
        a.i(f's_waitcnt vmcnt({12-i})')
        if i in (0, 12):
            a.i(f'v_cndmask_b32 v{o+1}, v{o+1}, 0, vcc')
            a.i(f'v_cndmask_b32 v{o+3}, v{o+3}, 0, vcc')
        z = cx.new()
        a.i(f'v_sub_f32 v{z[0]}, v{o}, v{o+3}')
        a.i(f'v_add_f32 v{z[1]}, v{o+1}, v{o+2}')
        if i < 12:
            m = pool.get_aligned(2, 2)
            a.i(f'v_add_f32 v{m}, v{o}, v{o+3}')
            a.i(f'v_sub_f32 v{m+1}, v{o+2}, v{o+1}')
            a.i(f'ds_write_b64 v{vw}, v[{m}:{m+1}] offset:{192*(12-i)}')
            pool.put(m, m + 1)
            own.append(z)
        else:
            m = pool.get_aligned(2, 2)
            a.i(f'v_mov_b32 v{m}, v{z[0]}')
            a.i(f'v_mov_b32 v{m+1}, v{z[1]}')
            cx.free(z)
            a.i(f'v_mul_u32_u24 v6, {FP2}, v{vf}')
            a.i(f'v_add_u32 v6, {L_EX2}, v6')
            a.i(f'v_add_u32 v7, {2552}, v6')
            a.i('v_cndmask_b32 v6, v7, v6, vcc')
            a.i(f'ds_write_b64 v6, v[{m}:{m+1}]')
            pool.put(m, m + 1)
        pool.put(o, o + 1, o + 2, o + 3)
    a.i('s_waitcnt lgkmcnt(0)')
    a.i('s_barrier')
    vr = 5
    a.i(f'v_mul_u32_u24 v{vr}, {FP2}, v{vf}')
    a.i(f'v_lshlrev_b32 v6, 3, v{vj}')
    a.i(f'v_add_u32 v{vr}, v{vr}, v6')
    z = list(own)
    for r in range(12, 24):
        b = pool.get_aligned(2, 2)
        a.i(f'ds_read_b64 v[{b}:{b+1}], v{vr} offset:{L_EX2 + 192*(r-12)}')
        z.append((b, b + 1))
    a.i('s_waitcnt lgkmcnt(0)')
    Z = cx.dft24(z, -1)
    vw = 4
    a.i(f'v_mul_u32_u24 v{vw}, {FP}, v{vf}')
    a.i(f'v_mul_u32_u24 v5, 192, v{vj}')
    a.i(f'v_add_u32 v{vw}, v{vw}, v5')
    for q in range(24):
        c = Z[q]
        a.i(f'ds_write_b32 v{vw}, v{c[0]} offset:{L_EX + 8*q}')
        a.i(f'ds_write_b32 v{vw}, v{c[1]} offset:{L_EX + 8*q + 4}')
        cx.free(c)
    a.i('s_waitcnt lgkmcnt(0)')
    a.i('s_barrier')
    vr2 = 5
    a.i(f'v_mul_u32_u24 v{vr2}, {FP}, v{vf}')
    a.i(f'v_lshlrev_b32 v6, 3, v{vj}')
    a.i(f'v_add_u32 v{vr2}, v{vr2}, v6')
    z = []
    for r in range(24):
        base = pool.get_aligned(2, 2)
        a.i(f'ds_read_b64 v[{base}:{base+1}], v{vr2} offset:{L_EX + 192*r}')
        z.append((base, base + 1))
    vb = 6
    a.i(f'v_cvt_f32_u32 v{vb}, v{vj}')
    a.i(f'v_mul_f32 v{vb}, {fb(1.0/576)}, v{vb}')
    a.i('s_waitcnt lgkmcnt(0)')
    z = cx.twiddle_all(z, vb, -1, list(range(24)))
    Z = cx.dft24(z, -1)
    va = 4
    a.i(f'v_mul_u32_u24 v{va}, {HP_PITCH}, v{vf}')
    a.i(f'v_lshlrev_b32 v5, 2, v{vj}')
    a.i(f'v_add_u32 v{va}, v{va}, v5')
    SC = 1.0 / (2.0 * S * D)
    for q in range(24):
        c = Z[q]
        a.i(f'v_mul_f32 v{c[0]}, {fb(SC)}, v{c[0]}')
        a.i(f'v_mul_f32 v{c[1]}, {fb(SC)}, v{c[1]}')
        bf16_round2(a, c[0], c[1], c[0], c[1])
        a.i(f'ds_write_b32 v{va}, v{c[0]} offset:{L_HP + 96*q}')
        a.i(f'ds_write_b32 v{va}, v{c[1]} offset:{L_HP + 8*HP_PITCH + 96*q}')
        cx.free(c)
    fft_max = pool.maxused
    vrow, vch, vt = 1, 2, 3
    row_thread_decomp(a, vrow, vch, vt)
    a.i(f'v_add_u32 v4, s20, v{vrow}')
    a.i(f'v_mul_u32_u24 v4, {D*2}, v4')
    a.i(f'v_mul_u32_u24 v5, 96, v{vch}')
    a.i('v_add_u32 v4, v4, v5')
    XRAW = 8
    for q in range(6):
        a.i(f'buffer_load_dwordx4 v[{XRAW+4*q}:{XRAW+4*q+3}], v4, s[8:11], 0 offen offset:{16*q}')
    a.i(f'v_mul_u32_u24 v5, 192, v{vch}')
    GA = 104; SB = 152; CB = 200
    a.i(f's_mov_b32 s21, {2*D*4}')
    a.i(f's_mov_b32 s22, {3*D*4}')
    a.i(f's_mov_b32 s23, {4*D*4}')
    for q in range(12):
        a.i(f'buffer_load_dwordx4 v[{GA+4*q}:{GA+4*q+3}], v5, s[12:15], s21 offen offset:{16*q}')
    for q in range(12):
        a.i(f'buffer_load_dwordx4 v[{SB+4*q}:{SB+4*q+3}], v5, s[12:15], s22 offen offset:{16*q}')
    for q in range(12):
        a.i(f'buffer_load_dwordx4 v[{CB+4*q}:{CB+4*q+3}], v5, s[12:15], s23 offen offset:{16*q}')
    a.i('s_waitcnt lgkmcnt(0)')
    a.i('s_barrier')
    a.i(f'v_and_b32 v6, 1, v{vrow}')
    a.i('v_lshlrev_b32 v6, 3, v6')
    a.i(f'v_lshrrev_b32 v7, 1, v{vrow}')
    a.i('v_add_u32 v6, v6, v7')
    a.i(f'v_mul_u32_u24 v6, {HP_PITCH}, v6')
    a.i('v_add_u32 v6, v6, v5')
    YS = list(range(32, 80))
    for q in range(12):
        a.i(f'ds_read_b128 v[{YS[4*q]}:{YS[4*q]+3}], v6 offset:{L_HP + 16*q}')
    a.i('s_waitcnt vmcnt(24) lgkmcnt(0)')
    for q in range(24):
        y0, y1 = YS[2*q], YS[2*q+1]
        a.i(f'v_mul_f32 v{y0}, v{y0}, v{GA+2*q}')
        a.i(f'v_mul_f32 v{y1}, v{y1}, v{GA+2*q+1}')
        bf16_round2(a, y0, y1, y0, y1)
        a.i(f'v_lshlrev_b32 v7, 16, v{XRAW+q}')
        a.i(f'v_and_b32 v{XRAW+q}, 0xffff0000, v{XRAW+q}')
        a.i(f'v_add_f32 v{y0}, v7, v{y0}')
        a.i(f'v_add_f32 v{y1}, v{XRAW+q}, v{y1}')
        a.i(f'v_cvt_pk_bf16_f32 v{XRAW+q}, v{y0}, v{y1}')
        a.i(f'v_lshlrev_b32 v{y0}, 16, v{XRAW+q}')
        a.i(f'v_and_b32 v{y1}, 0xffff0000, v{XRAW+q}')
    for q in range(6):
        a.i(f'buffer_store_dwordx4 v[{XRAW+4*q}:{XRAW+4*q+3}], v4, s[24:27], 0 offen offset:{16*q}')
    T = dict(t0=6, t1=7, acc=80, rd=84, mean=96, rinv=97)
    vm, vr_ = ln_stats_and_norm(a, YS, vrow, T, L_RED, None)
    a.i('s_waitcnt vmcnt(6)')
    ln_apply(a, YS, vm, vr_, list(range(CB, CB + 48)), list(range(SB, SB + 48)))
    a.i('s_waitcnt vmcnt(0)')
    for q in range(24):
        a.i(f'v_cvt_pk_bf16_f32 v{XRAW+q}, v{YS[2*q]}, v{YS[2*q+1]}')
    for q in range(6):
        a.i(f'buffer_store_dwordx4 v[{XRAW+4*q}:{XRAW+4*q+3}], v4, s[28:31], 0 offen offset:{16*q}')
    a.label('K3_END')
    a.i('s_endpgm')
    return name, max(fft_max, 248), NWG, NT, LDS_BYTES
```

```python
import sys
from common import *
import k_prep, k_rows2 as k_rows, k_cols, k_gemm

def build(kernels, path):
    a = Asm()
    infos = []
    body = Asm()
    for g in kernels:
        infos.append(g(body))
    hdr = open('adaLN_cond__spectral_gfnet__dense_activation_silu__prompt.s.ref').read().split('; @launch')[0]
    out = [hdr.rstrip('\n')]
    for (name, vg, nwg, nt, lds) in infos:
        out.append(f'; @launch kernel={name} grid=({nwg},1,1) block=({nt},1,1) lds={lds}')
    out.append('.amdgcn_target "amdgcn-amd-amdhsa--gfx950"')
    out.append('.text')
    out.append(body.text())
    out.append('.section .rodata,"a"')
    seen = set()
    for (name, vg, nwg, nt, lds) in infos:
        if name in seen: continue
        seen.add(name)
        out.append(kd(name, vg))
    open(path, 'w').write('\n'.join(out) + '\n')
    for inf in infos:
        print(inf)

if __name__ == '__main__':
    ks = [k_prep.gen, k_rows.gen_ln_rfft, k_cols.gen, k_rows.gen_irfft_ln, k_gemm.gen_gemm1, k_gemm.gen_gemm2, k_gemm.gen_final]
    build(ks, sys.argv[1] if len(sys.argv) > 1 else 'k.s')
```

```python
import math
from common import fb

R2 = 1.0 / math.sqrt(2.0)
S3 = math.sqrt(3.0) / 2.0

class CX:
    def __init__(self, a, pool):
        self.a = a; self.p = pool
    def new(self):
        return (self.p.get(), self.p.get())
    def free(self, x):
        self.p.put(x[0], x[1])
    def bfly(self, x, y):
        a = self.a
        out = []
        for c in (0, 1):
            t = self.p.get()
            a.i(f'v_add_f32 v{t}, v{x[c]}, v{y[c]}')
            a.i(f'v_sub_f32 v{y[c]}, v{x[c]}, v{y[c]}')
            self.p.put(x[c])
            out.append(t)
        return (out[0], out[1]), y
    def bfly_i(self, x, y, sg):
        a = self.a
        mre = self.p.get(); mim = self.p.get()
        pre = self.p.get(); pim = self.p.get()
        a.i(f'v_add_f32 v{mre}, v{x[0]}, v{y[1]}')
        a.i(f'v_sub_f32 v{mim}, v{x[1]}, v{y[0]}')
        a.i(f'v_sub_f32 v{pre}, v{x[0]}, v{y[1]}')
        a.i(f'v_add_f32 v{pim}, v{x[1]}, v{y[0]}')
        self.free(x); self.free(y)
        m = (mre, mim); p = (pre, pim)
        return (m, p) if sg > 0 else (p, m)
    def dft4(self, y, sg):
        s0, d0 = self.bfly(y[0], y[2])
        s1, d1 = self.bfly(y[1], y[3])
        Y0, Y2 = self.bfly(s0, s1)
        Y1, Y3 = self.bfly_i(d0, d1, sg)
        return [Y0, Y1, Y2, Y3]
    def mul_w8_1(self, b, sg):
        a = self.a
        t0 = self.p.get(); t1 = self.p.get()
        if sg > 0:
            a.i(f'v_add_f32 v{t0}, v{b[0]}, v{b[1]}')
            a.i(f'v_sub_f32 v{t1}, v{b[1]}, v{b[0]}')
        else:
            a.i(f'v_sub_f32 v{t0}, v{b[0]}, v{b[1]}')
            a.i(f'v_add_f32 v{t1}, v{b[0]}, v{b[1]}')
        a.i(f'v_mul_f32 v{t0}, {fb(R2)}, v{t0}')
        a.i(f'v_mul_f32 v{t1}, {fb(R2)}, v{t1}')
        self.free(b)
        return (t0, t1)
    def mul_w8_3(self, b, sg):
        a = self.a
        t0 = self.p.get(); t1 = self.p.get()
        if sg > 0:
            a.i(f'v_sub_f32 v{t0}, v{b[1]}, v{b[0]}')
            a.i(f'v_add_f32 v{t1}, v{b[0]}, v{b[1]}')
            a.i(f'v_mul_f32 v{t0}, {fb(R2)}, v{t0}')
            a.i(f'v_mul_f32 v{t1}, {fb(-R2)}, v{t1}')
        else:
            a.i(f'v_add_f32 v{t0}, v{b[0]}, v{b[1]}')
            a.i(f'v_sub_f32 v{t1}, v{b[0]}, v{b[1]}')
            a.i(f'v_mul_f32 v{t0}, {fb(-R2)}, v{t0}')
            a.i(f'v_mul_f32 v{t1}, {fb(R2)}, v{t1}')
        self.free(b)
        return (t0, t1)
    def dft8(self, x, sg):
        A = [None] * 4; B = [None] * 4
        for k in range(4):
            A[k], B[k] = self.bfly(x[k], x[k + 4])
        E = self.dft4(A, sg)
        b1 = self.mul_w8_1(B[1], sg)
        b3 = self.mul_w8_3(B[3], sg)
        s0, d0 = self.bfly_i(B[0], B[2], sg)
        s1, d1 = self.bfly(b1, b3)
        Y0, Y2 = self.bfly(s0, s1)
        Y1, Y3 = self.bfly_i(d0, d1, sg)
        X = [None] * 8
        X[0], X[2], X[4], X[6] = E
        X[1], X[3], X[5], X[7] = Y0, Y1, Y2, Y3
        return X
    def dft3(self, x, sg):
        a = self.a
        t1, t2 = self.bfly(x[1], x[2])
        X0 = self.new()
        m1 = self.new()
        for c in (0, 1):
            a.i(f'v_add_f32 v{X0[c]}, v{x[0][c]}, v{t1[c]}')
            a.i(f'v_fma_f32 v{m1[c]}, -0.5, v{t1[c]}, v{x[0][c]}')
            a.i(f'v_mul_f32 v{t2[c]}, {fb(S3)}, v{t2[c]}')
        self.free(x[0]); self.free(t1)
        X1, X2 = self.bfly_i(m1, t2, sg)
        return [X0, X1, X2]
    def dft24(self, x, sg):
        Y = []
        for n1 in range(3):
            grp = [x[(8 * n1 + 3 * n2) % 24] for n2 in range(8)]
            Y.append(self.dft8(grp, sg))
        X = [None] * 24
        for k2 in range(8):
            o = self.dft3([Y[0][k2], Y[1][k2], Y[2][k2]], sg)
            for k1 in range(3):
                X[(16 * k1 + 9 * k2) % 24] = o[k1]
        return X
    def cmul_tw(self, x, c, s, sg):
        a = self.a
        t0 = self.p.get(); t1 = self.p.get()
        a.i(f'v_mul_f32 v{t0}, v{x[0]}, v{c}')
        a.i(f'v_mul_f32 v{t1}, v{x[1]}, v{c}')
        if sg > 0:
            a.i(f'v_fmac_f32 v{t0}, v{x[1]}, v{s}')
            a.i(f'v_fma_f32 v{t1}, -v{x[0]}, v{s}, v{t1}')
        else:
            a.i(f'v_fma_f32 v{t0}, -v{x[1]}, v{s}, v{t0}')
            a.i(f'v_fmac_f32 v{t1}, v{x[0]}, v{s}')
        self.free(x)
        return (t0, t1)
    def twiddle_all(self, v, base, sg, mults):
        a = self.a
        pend = None
        for r in range(len(v)):
            if mults[r] == 0:
                continue
            ang = self.p.get(); c = self.p.get(); s = self.p.get()
            if mults[r] == 1:
                a.i(f'v_sin_f32 v{s}, v{base}')
                a.i(f'v_cos_f32 v{c}, v{base}')
            else:
                a.i(f'v_mul_f32 v{ang}, {fb(float(mults[r]))}, v{base}')
                a.i(f'v_sin_f32 v{s}, v{ang}')
                a.i(f'v_cos_f32 v{c}, v{ang}')
            self.p.put(ang)
            if pend is not None:
                pr, pc, ps = pend
                v[pr] = self.cmul_tw(v[pr], pc, ps, sg)
                self.p.put(pc, ps)
            pend = (r, c, s)
        if pend is not None:
            pr, pc, ps = pend
            v[pr] = self.cmul_tw(v[pr], pc, ps, sg)
            self.p.put(pc, ps)
        return v


def _dft12(self, x, sg):
    Y = []
    for n1 in range(3):
        grp = [x[(4 * n1 + 3 * n2) % 12] for n2 in range(4)]
        Y.append(self.dft4(grp, sg))
    X = [None] * 12
    for k2 in range(4):
        o = self.dft3([Y[0][k2], Y[1][k2], Y[2][k2]], sg)
        for k1 in range(3):
            X[(4 * k1 + 9 * k2) % 12] = o[k1]
    return X
CX.dft12 = _dft12
```

```python
from common import *

BM, BN, BK = 128, 144, 64
NB = BN // 16
BPITCH = 288
BUFSZ = 64 * BPITCH + 8 * 128
L_B0 = 0
L_B1 = BUFSZ
L_SCR = 2 * BUFSZ
LDS_BYTES = L_SCR + 1024 + 64

def lds_b_addr(k, ncol_bytes):
    return k * BPITCH + (k >> 3) * 128 + ncol_bytes

class VQ:
    def __init__(self): self.q = []
    def push(self, tag): self.q.append(tag)
    def wait_for(self, tag):
        idx = max(i for i, t in enumerate(self.q) if t == tag)
        return len(self.q) - 1 - idx

import os
ABL = os.environ.get('ABL', '')
def gen_gemm(a, name, nwg, Kfull, KLEN, N, a_off_ws, a_bytes, b_karg, c_off_ws, c_bytes, mode, nsplit, ntn, NW=4):
    T = KLEN // BK
    NTH = 64 * NW
    NCH = (1152 + NTH - 1) // NTH
    LBM = (32 * NW).bit_length() - 1
    kernel_begin(a, name)
    a.i(f's_cmp_ge_u32 s2, {nwg}')
    a.i(f's_cbranch_scc1 {name}_END')
    a.i(f's_load_dwordx2 s[4:5], s[0:1], {b_karg}')
    a.i(f's_load_dwordx2 s[6:7], s[0:1], {KA_WS}')
    if nsplit > 1:
        assert nsplit & (nsplit - 1) == 0
        a.i(f's_and_b32 s20, s2, {nsplit-1}')
        a.i(f's_lshr_b32 s21, s2, {nsplit.bit_length()-1}')
    else:
        a.i('s_mov_b32 s20, 0')
        a.i('s_mov_b32 s21, s2')
    assert ntn & (ntn - 1) == 0
    a.i(f's_and_b32 s22, s21, {ntn-1}')
    a.i(f's_lshr_b32 s23, s21, {ntn.bit_length()-1}')
    a.i('s_waitcnt lgkmcnt(0)')
    srd(a, 8, 6, 7, a_bytes, a_off_ws)
    srd(a, 12, 4, 5, Kfull * N * 2)
    srd(a, 16, 6, 7, c_bytes, c_off_ws)
    ACC = 8
    AST = 80
    BST = 128
    BFR = 168
    V_A0, V_A1 = 240, 241
    V_BG = 242
    V_BL = 247
    V_TR = 252
    V_C = 253
    NV = 256
    a.i('v_and_b32 v1, 63, v0')
    a.i('v_lshrrev_b32 v2, 6, v0')
    a.i('v_and_b32 v3, 15, v1')
    a.i('v_lshrrev_b32 v4, 4, v1')
    a.i(f's_lshl_b32 s24, s23, {LBM}')
    a.i('v_lshlrev_b32 v5, 5, v2')
    a.i('v_add3_u32 v5, v5, s24, v3')
    a.i(f's_mov_b32 s25, {Kfull*2}')
    a.i('v_mul_lo_u32 v5, v5, s25')
    a.i('v_lshlrev_b32 v6, 4, v4')
    a.i(f's_mul_i32 s26, s20, {KLEN*2}')
    a.i(f'v_add3_u32 v{V_A0}, v5, v6, s26')
    a.i(f'v_add_u32 v{V_A1}, {16*Kfull*2}, v{V_A0}')
    a.i(f's_mul_i32 s27, s20, {KLEN*N*2}')
    a.i(f's_mul_i32 s28, s22, {BN*2}')
    a.i('s_add_u32 s27, s27, s28')
    for i in range(NCH):
        a.i(f'v_add_u32 v5, {i*NTH}, v0')
        a.i('v_mul_u32_u24 v6, 3641, v5')
        a.i('v_lshrrev_b32 v6, 16, v6')
        a.i('v_mul_u32_u24 v7, 18, v6')
        a.i('v_sub_u32 v7, v5, v7')
        a.i(f's_mov_b32 s29, {N*2}')
        a.i(f'v_mul_lo_u32 v{V_BG+i}, v6, s29')
        a.i(f'v_lshlrev_b32 v5, 4, v7')
        a.i(f'v_add3_u32 v{V_BG+i}, v{V_BG+i}, v5, s27')
        a.i(f'v_mul_u32_u24 v{V_BL+i}, {BPITCH}, v6')
        a.i('v_lshrrev_b32 v6, 3, v6')
        a.i('v_lshlrev_b32 v6, 7, v6')
        a.i(f'v_add3_u32 v{V_BL+i}, v{V_BL+i}, v6, v5')
        if i == NCH - 1 and NCH * NTH > 1152:
            a.i(f'v_add_u32 v5, {i*NTH}, v0')
            a.i('v_cmp_gt_u32 vcc, 1152, v5')
            a.i(f'v_mov_b32 v6, 0x7ffffff0')
            a.i(f'v_cndmask_b32 v{V_BG+i}, v6, v{V_BG+i}, vcc')
            a.i(f'v_lshlrev_b32 v6, 4, v1')
            a.i(f'v_add_u32 v6, {L_SCR}, v6')
            a.i(f'v_cndmask_b32 v{V_BL+i}, v6, v{V_BL+i}, vcc')
    a.i('v_lshrrev_b32 v5, 2, v3')
    a.i('v_lshlrev_b32 v6, 3, v4')
    a.i('v_add_u32 v5, v5, v6')
    a.i(f'v_mul_u32_u24 v5, {BPITCH}, v5')
    a.i('v_lshlrev_b32 v6, 7, v4')
    a.i('v_and_b32 v7, 3, v3')
    a.i('v_lshlrev_b32 v7, 3, v7')
    a.i(f'v_add3_u32 v{V_TR}, v5, v6, v7')
    vq = VQ(); lq = VQ()
    def ldA(t):
        st = AST + (t % 3) * 16
        out = []
        for kk in range(2):
            for mb in range(2):
                r = st + (kk * 2 + mb) * 4
                off = t * 128 + kk * 64
                out.append((f'buffer_load_dwordx4 v[{r}:{r+3}], v{V_A0 if mb == 0 else V_A1}, s[8:11], 0 offen offset:{off}', 'v', ('A', t)))
        return out
    def ldB(t):
        st = BST + (t % 2) * 20
        out = [(f's_mov_b32 s30, {t*BK*N*2}', None, None)]
        for i in range(NCH):
            r = st + 4 * i
            out.append((f'buffer_load_dwordx4 v[{r}:{r+3}], v{V_BG+i}, s[12:15], s30 offen', 'v', ('B', t)))
        return out
    def stB(t):
        st = BST + (t % 2) * 20
        base = L_B0 if t % 2 == 0 else L_B1
        return [(f'ds_write_b128 v{V_BL+i}, v[{st+4*i}:{st+4*i+3}] offset:{base}', 'l', ('W', t)) for i in range(NCH)]
    def emit(ins):
        text, q, tag = ins
        a.i(text)
        if q == 'v': vq.push(tag)
        elif q == 'l': lq.push(tag)
    def wait_v(tag):
        a.i(f's_waitcnt vmcnt({vq.wait_for(tag)})')
    def wait_l(tag):
        a.i(f's_waitcnt lgkmcnt({min(15, lq.wait_for(tag))})')
    def trreads(t, kk):
        base = L_B0 if t % 2 == 0 else L_B1
        out = []
        for nb in range(NB):
            r = BFR + kk * 36 + nb * 4
            off = base + kk * (32 * BPITCH + 4 * 128) + nb * 32
            out.append((f'ds_read_b64_tr_b16 v[{r}:{r+1}], v{V_TR} offset:{off}', 'l', ('R', t, kk, nb, 0)))
            out.append((f'ds_read_b64_tr_b16 v[{r+2}:{r+3}], v{V_TR} offset:{off + 4*BPITCH}', 'l', ('R', t, kk, nb, 1)))
        return out
    def mfma_pair(t, kk, nb):
        st = AST + (t % 3) * 16
        bf = BFR + kk * 36 + nb * 4
        for mb in range(2):
            af = st + (kk * 2 + mb) * 4
            acc = ACC + (mb * NB + nb) * 4
            c = '0' if (t == 0 and kk == 0) else f'v[{acc}:{acc+3}]'
            a.i(f'v_mfma_f32_16x16x32_bf16 v[{acc}:{acc+3}], v[{bf}:{bf+3}], v[{af}:{af+3}], {c}')
    for x in ldB(0) + ldA(0): emit(x)
    if T > 1:
        for x in ldB(1) + ldA(1): emit(x)
    wait_v(('B', 0))
    for x in stB(0): emit(x)
    if T > 2:
        for x in ldB(2): emit(x)
    a.i('s_waitcnt lgkmcnt(0)')
    a.i('s_barrier')
    for t in range(T):
        r0 = trreads(t, 0); r1 = trreads(t, 1)
        for x in r0: emit(x)
        wait_v(('A', t))
        for nb in range(NB):
            wait_l(('R', t, 0, nb, 1))
            mfma_pair(t, 0, nb)
            emit(r1[2 * nb]); emit(r1[2 * nb + 1])
        fill = []
        if t + 1 < T:
            fill.append(('WAITB', t + 1))
            fill += stB(t + 1)
            if t + 3 < T:
                fill += ldB(t + 3)
        if t + 2 < T:
            fill += ldA(t + 2)
        per = (len(fill) + NB - 1) // NB if fill else 0
        for nb in range(NB):
            wait_l(('R', t, 1, nb, 1))
            mfma_pair(t, 1, nb)
            for _ in range(per):
                if fill:
                    f = fill.pop(0)
                    if f[0] == 'WAITB': wait_v(('B', f[1]))
                    else: emit(f)
        while fill:
            f = fill.pop(0)
            if f[0] == 'WAITB': wait_v(('B', f[1]))
            else: emit(f)
        if t + 1 < T:
            a.i('s_waitcnt lgkmcnt(0)')
            a.i('s_barrier')
    esz = 2 if mode == 'silu' else 4
    a.i('v_lshlrev_b32 v5, 5, v2')
    a.i('v_add3_u32 v5, v5, s24, v3')
    a.i(f's_mov_b32 s25, {N*esz}')
    a.i('v_mul_lo_u32 v5, v5, s25')
    a.i(f'v_lshlrev_b32 v6, {2 + (1 if esz == 2 else 2)}, v4')
    a.i(f's_mul_i32 s28, s22, {BN*esz}')
    a.i(f'v_add3_u32 v{V_C}, v5, v6, s28')
    if mode == 'part':
        a.i(f's_mul_i32 s31, s20, {S*N*4}')
        a.i(f'v_add_u32 v{V_C}, s31, v{V_C}')
    a.i(f's_mov_b32 s29, {16*N*esz}')
    for mb in range(2 if 'E' not in ABL else 0):
        for nb in range(NB):
            acc = ACC + (mb * NB + nb) * 4
            so = 's29' if mb else '0'
            if mode == 'part':
                a.i(f'buffer_store_dwordx4 v[{acc}:{acc+3}], v{V_C}, s[16:19], {so} offen offset:{nb*64}')
            else:
                t0, t1 = 1, 4
                bf16_round2(a, acc, acc + 1, acc, acc + 1)
                bf16_round2(a, acc + 2, acc + 3, acc + 2, acc + 3)
                for q in range(4):
                    silu_f32(a, acc + q, acc + q + 0, 5 + (q & 1)) if False else None
                for q in range(4):
                    tq = 5 + (q & 1)
                    a.i(f'v_mul_f32 v{tq}, {fb(-LOG2E)}, v{acc+q}')
                    a.i(f'v_exp_f32 v{tq}, v{tq}')
                    a.i(f'v_add_f32 v{tq}, 1.0, v{tq}')
                    a.i(f'v_rcp_f32 v{tq}, v{tq}')
                    a.i(f'v_mul_f32 v{acc+q}, v{tq}, v{acc+q}')
                a.i(f'v_cvt_pk_bf16_f32 v{acc}, v{acc}, v{acc+1}')
                a.i(f'v_cvt_pk_bf16_f32 v{acc+1}, v{acc+2}, v{acc+3}')
                a.i(f'buffer_store_dwordx2 v[{acc}:{acc+1}], v{V_C}, s[16:19], {so} offen offset:{nb*32}')
    a.label(f'{name}_END')
    a.i('s_endpgm')
    return name, NV, nwg, NTH, LDS_BYTES

G1_NW = int(os.environ.get('G1_NW', '8'))
def gen_gemm1(a):
    return gen_gemm(a, 'gemm1_kernel', (S // (32 * G1_NW)) * 32, D, D, F, WS_H2, SZ_X2, KA_W1, WS_ACT, SZ_ACT, 'silu', 1, 32, NW=G1_NW)

SPLIT2 = int(os.environ.get('SPLIT2', '4'))
def gen_gemm2(a):
    return gen_gemm(a, 'gemm2_kernel', 16 * 4 * SPLIT2, F, F // SPLIT2, D, WS_ACT, SZ_ACT, KA_W2, WS_PART, SPLIT2 * S * D * 4, 'part', SPLIT2, 4)

def gen_final(a):
    name = 'final_kernel'
    nthr = S * D // 8
    nwg = nthr // 256
    kernel_begin(a, name)
    a.i(f's_cmp_ge_u32 s2, {nwg}')
    a.i('s_cbranch_scc1 FIN_END')
    a.i(f's_load_dwordx2 s[4:5], s[0:1], {KA_OUT}')
    a.i(f's_load_dwordx2 s[6:7], s[0:1], {KA_WS}')
    a.i('s_waitcnt lgkmcnt(0)')
    srd(a, 8, 6, 7, SPLIT2 * S * D * 4, WS_PART)
    srd(a, 12, 6, 7, SZ_X2, WS_X2)
    srd(a, 16, 4, 5, S * D * 2)
    srd(a, 20, 6, 7, SZ_MOD, WS_MOD)
    a.i('s_lshl_b32 s3, s2, 8')
    a.i('v_add_u32 v1, s3, v0')
    a.i('v_lshlrev_b32 v2, 5, v1')
    a.i('v_lshlrev_b32 v3, 4, v1')
    for s in range(SPLIT2):
        a.i(f's_mov_b32 s24, {s*S*D*4}')
        a.i(f'buffer_load_dwordx4 v[{8+8*s}:{11+8*s}], v2, s[8:11], s24 offen')
        a.i(f'buffer_load_dwordx4 v[{12+8*s}:{15+8*s}], v2, s[8:11], s24 offen offset:16')
    XO = 8 + 8 * SPLIT2
    a.i(f'buffer_load_dwordx4 v[{XO}:{XO+3}], v3, s[12:15], 0 offen')
    a.i('v_mul_hi_u32 v4, v1, s25') if False else None
    a.i(f's_mov_b32 s25, {0x38E38E39}')
    a.i('v_mul_hi_u32 v4, v1, s25')
    a.i('v_lshrrev_b32 v4, 4, v4')
    a.i('v_mul_u32_u24 v4, 72, v4')
    a.i('v_sub_u32 v4, v1, v4')
    a.i('v_lshlrev_b32 v4, 5, v4')
    GB = XO + 4
    a.i(f's_mov_b32 s26, {5*D*4}')
    a.i(f'buffer_load_dwordx4 v[{GB}:{GB+3}], v4, s[20:23], s26 offen')
    a.i(f'buffer_load_dwordx4 v[{GB+4}:{GB+7}], v4, s[20:23], s26 offen offset:16')
    a.i('s_waitcnt vmcnt(0)')
    for e in range(8):
        for s in range(1, SPLIT2):
            a.i(f'v_add_f32 v{8+e}, v{8+e}, v{8+8*s+e}')
    for e in range(0, 8, 2):
        bf16_round2(a, 8 + e, 9 + e, 8 + e, 9 + e)
        a.i(f'v_mul_f32 v{8+e}, v{8+e}, v{GB+e}')
        a.i(f'v_mul_f32 v{9+e}, v{9+e}, v{GB+e+1}')
        bf16_round2(a, 8 + e, 9 + e, 8 + e, 9 + e)
        a.i(f'v_lshlrev_b32 v5, 16, v{XO+e//2}')
        a.i(f'v_and_b32 v6, 0xffff0000, v{XO+e//2}')
        a.i(f'v_add_f32 v{8+e}, v5, v{8+e}')
        a.i(f'v_add_f32 v{9+e}, v6, v{9+e}')
        a.i(f'v_cvt_pk_bf16_f32 v{XO+e//2}, v{8+e}, v{9+e}')
    a.i(f'buffer_store_dwordx4 v[{XO}:{XO+3}], v3, s[16:19], 0 offen')
    a.label('FIN_END')
    a.i('s_endpgm')
    return name, GB + 8, nwg, 256, 0
```

```python
from common import *
from fftlib import CX

ROWS_WG = 8
NFFT = 4
TPF = 48
NWG = S // ROWS_WG
NT = NFFT * TPF
EPT = 24
HP_PITCH = 2336
L_RED = 0
L_EX = 1536
FP = 4672
L_HP = L_EX + NFFT * FP
L_EXB = L_HP + 8 * HP_PITCH
L_MIR = L_HP
FP2 = 2688
LDS_BYTES = L_EXB + NFFT * FP + 64

def row_decomp(a, vrow, vch, tmp):
    a.i(f'v_mul_u32_u24 v{tmp}, 2731, v0')
    a.i(f'v_lshrrev_b32 v{vrow}, 16, v{tmp}')
    a.i(f'v_mul_u32_u24 v{tmp}, 24, v{vrow}')
    a.i(f'v_sub_u32 v{vch}, v0, v{tmp}')

def row_reduce(a, val, vrow, vt0, red_off, dst, tmps):
    a.i(f'v_lshlrev_b32 v{vt0}, 2, v0')
    a.i(f'ds_write_b32 v{vt0}, v{val} offset:{red_off}')
    a.i('s_waitcnt lgkmcnt(0)')
    a.i('s_barrier')
    a.i(f'v_mul_u32_u24 v{vt0}, 96, v{vrow}')
    for q in range(6):
        a.i(f'ds_read_b128 v[{tmps+4*q}:{tmps+4*q+3}], v{vt0} offset:{red_off + 16*q}')
    a.i('s_waitcnt lgkmcnt(0)')
    acc = [dst, tmps + 24, tmps + 25, tmps + 26]
    for k in range(4):
        a.i(f'v_add_f32 v{acc[k]}, v{tmps+k}, v{tmps+4+k}')
    for q in range(8, 24):
        a.i(f'v_add_f32 v{acc[q&3]}, v{acc[q&3]}, v{tmps+q}')
    a.i(f'v_add_f32 v{acc[0]}, v{acc[0]}, v{acc[1]}')
    a.i(f'v_add_f32 v{acc[2]}, v{acc[2]}, v{acc[3]}')
    a.i(f'v_add_f32 v{dst}, v{acc[0]}, v{acc[2]}')

def ln_stats(a, xs, vrow, T):
    n = len(xs)
    acc = T['acc']
    for k in range(4):
        a.i(f'v_add_f32 v{acc+k}, v{xs[k]}, v{xs[k+4]}')
    for i in range(8, n):
        a.i(f'v_add_f32 v{acc+(i&3)}, v{acc+(i&3)}, v{xs[i]}')
    a.i(f'v_add_f32 v{acc}, v{acc}, v{acc+1}')
    a.i(f'v_add_f32 v{acc+2}, v{acc+2}, v{acc+3}')
    a.i(f'v_add_f32 v{acc}, v{acc}, v{acc+2}')
    row_reduce(a, acc, vrow, T['t0'], L_RED, T['mean'], T['rd'])
    a.i(f'v_mul_f32 v{T["mean"]}, {fb(1.0/576)}, v{T["mean"]}')
    for k in range(4):
        a.i(f'v_sub_f32 v{T["t1"]}, v{xs[k]}, v{T["mean"]}')
        a.i(f'v_mul_f32 v{acc+k}, v{T["t1"]}, v{T["t1"]}')
    for i in range(4, n):
        a.i(f'v_sub_f32 v{T["t1"]}, v{xs[i]}, v{T["mean"]}')
        a.i(f'v_fmac_f32 v{acc+(i&3)}, v{T["t1"]}, v{T["t1"]}')
    a.i(f'v_add_f32 v{acc}, v{acc}, v{acc+1}')
    a.i(f'v_add_f32 v{acc+2}, v{acc+2}, v{acc+3}')
    a.i(f'v_add_f32 v{acc}, v{acc}, v{acc+2}')
    row_reduce(a, acc, vrow, T['t0'], L_RED + NT * 4, T['rinv'], T['rd'])
    v = T['rinv']
    a.i(f'v_mul_f32 v{v}, {fb(1.0/576)}, v{v}')
    bf16_round(a, v, v)
    a.i(f'v_add_f32 v{v}, {fb(1e-5)}, v{v}')
    bf16_round(a, v, v)
    a.i(f'v_sqrt_f32 v{v}, v{v}')
    bf16_round(a, v, v)
    a.i(f'v_rcp_f32 v{v}, v{v}')
    bf16_round(a, T['mean'], T['mean'])
    return T['mean'], v

def ln_apply(a, xs, vm, vr, ca1, sa):
    for i in range(0, len(xs), 2):
        x0, x1 = xs[i], xs[i + 1]
        a.i(f'v_sub_f32 v{x0}, v{x0}, v{vm}')
        a.i(f'v_sub_f32 v{x1}, v{x1}, v{vm}')
        bf16_round2(a, x0, x1, x0, x1)
        a.i(f'v_mul_f32 v{x0}, v{x0}, v{vr}')
        a.i(f'v_mul_f32 v{x1}, v{x1}, v{vr}')
        bf16_round2(a, x0, x1, x0, x1)
        a.i(f'v_mul_f32 v{x0}, v{x0}, v{ca1[i]}')
        a.i(f'v_mul_f32 v{x1}, v{x1}, v{ca1[i+1]}')
        bf16_round2(a, x0, x1, x0, x1)
        a.i(f'v_add_f32 v{x0}, v{x0}, v{sa[i]}')
        a.i(f'v_add_f32 v{x1}, v{x1}, v{sa[i+1]}')
        bf16_round2(a, x0, x1, x0, x1)

def plane_addr(a, dst, vrow, vch_off, tmp):
    a.i(f'v_and_b32 v{dst}, 1, v{vrow}')
    a.i(f'v_lshlrev_b32 v{dst}, 2, v{dst}')
    a.i(f'v_lshrrev_b32 v{tmp}, 1, v{vrow}')
    a.i(f'v_add_u32 v{dst}, v{dst}, v{tmp}')
    a.i(f'v_mul_u32_u24 v{dst}, {HP_PITCH}, v{dst}')
    a.i(f'v_add_u32 v{dst}, v{dst}, v{vch_off}')

def fft576(a, cx, pool, v, sg, R):
    def xchg(vals, wbase, wstride, rbase, lds_off):
        for r, c in enumerate(vals):
            a.i(f'ds_write_b32 v{wbase}, v{c[0]} offset:{lds_off + wstride*r}')
            a.i(f'ds_write_b32 v{wbase}, v{c[1]} offset:{lds_off + wstride*r + 4}')
            cx.free(c)
        a.i('s_waitcnt lgkmcnt(0)')
        a.i('s_barrier')
        out = []
        for q in range(12):
            b = pool.get_aligned(2, 2)
            a.i(f'ds_read_b64 v[{b}:{b+1}], v{rbase} offset:{lds_off + 384*q}')
            out.append((b, b + 1))
        a.i('s_waitcnt lgkmcnt(0)')
        return out
    V = cx.dft12(v, sg)
    v = xchg(V, R['w0'], 8, R['rd'], L_EX)
    v = cx.twiddle_all(v, R['ang1'], sg, list(range(12)))
    V = cx.dft12(v, sg)
    v = xchg(V, R['w1'], 96, R['rd'], L_EXB)
    out = [None] * 12
    for i in range(3):
        g = [v[i + 3 * r] for r in range(4)]
        g = cx.twiddle_all(g, R['ang2'][i], sg, [0, 1, 2, 3])
        o = cx.dft4(g, sg)
        for r in range(4):
            out[i + 3 * r] = o[r]
    return out

def fft_regs(a, pool, vj, vf):
    R = {}
    def reg(n): R[n] = pool.get(); return R[n]
    a.i(f'v_mul_u32_u24 v3, {FP}, v{vf}')
    a.i(f'v_mul_u32_u24 v4, 96, v{vj}')
    a.i(f'v_add_u32 v{reg("w0")}, v3, v4')
    a.i(f'v_lshlrev_b32 v4, 3, v{vj}')
    a.i(f'v_add_u32 v{reg("rd")}, v3, v4')
    a.i(f'v_mul_u32_u24 v4, 21846, v{vj}')
    a.i('v_lshrrev_b32 v4, 18, v4')
    a.i('v_mul_u32_u24 v5, 12, v4')
    a.i(f'v_sub_u32 v5, v{vj}, v5')
    a.i('v_mul_u32_u24 v4, 1152, v4')
    a.i('v_lshlrev_b32 v5, 3, v5')
    a.i('v_add3_u32 v4, v3, v4, v5')
    a.i(f'v_mov_b32 v{reg("w1")}, v4')
    a.i(f'v_mul_u32_u24 v4, 21846, v{vj}')
    a.i('v_lshrrev_b32 v4, 18, v4')
    a.i('v_mul_u32_u24 v4, 12, v4')
    a.i(f'v_sub_u32 v4, v{vj}, v4')
    a.i('v_cvt_f32_u32 v4, v4')
    a.i(f'v_mul_f32 v{reg("ang1")}, {fb(1.0/144)}, v4')
    R['ang2'] = []
    a.i(f'v_cvt_f32_u32 v4, v{vj}')
    for i in range(3):
        r = pool.get()
        if i:
            a.i(f'v_add_f32 v4, {fb(48.0)}, v4')
        a.i(f'v_mul_f32 v{r}, {fb(1.0/576)}, v4')
        R['ang2'].append(r)
    return R

def gen_ln_rfft(a):
    name = 'ln_rfft_kernel'
    kernel_begin(a, name)
    a.i(f's_cmp_ge_u32 s2, {NWG}')
    a.i('s_cbranch_scc1 K1_END')
    a.i(f's_load_dwordx2 s[4:5], s[0:1], {KA_X}')
    a.i(f's_load_dwordx2 s[6:7], s[0:1], {KA_WS}')
    a.i('s_waitcnt lgkmcnt(0)')
    srd(a, 8, 4, 5, S * D * 2)
    srd(a, 12, 6, 7, SZ_MOD, WS_MOD)
    srd(a, 16, 6, 7, SZ_XF, WS_XF)
    a.i('s_lshl_b32 s20, s2, 3')
    vrow, vch, vt = 1, 2, 3
    row_decomp(a, vrow, vch, vt)
    a.i(f'v_add_u32 v4, s20, v{vrow}')
    a.i(f'v_mul_u32_u24 v4, {D*2}, v4')
    a.i(f'v_mul_u32_u24 v5, 48, v{vch}')
    a.i('v_add_u32 v4, v4, v5')
    XRAW = 8
    for q in range(3):
        a.i(f'buffer_load_dwordx4 v[{XRAW+4*q}:{XRAW+4*q+3}], v4, s[8:11], 0 offen offset:{16*q}')
    a.i(f'v_mul_u32_u24 v5, 96, v{vch}')
    CA = 80; SA = 104
    for q in range(6):
        a.i(f'buffer_load_dwordx4 v[{SA+4*q}:{SA+4*q+3}], v5, s[12:15], 0 offen offset:{16*q}')
    for q in range(6):
        a.i(f'buffer_load_dwordx4 v[{CA+4*q}:{CA+4*q+3}], v5, s[12:15], 0 offen offset:{D*4 + 16*q}')
    XS = list(range(20, 44))
    a.i('s_waitcnt vmcnt(12)')
    for q in range(12):
        a.i(f'v_lshlrev_b32 v{XS[2*q]}, 16, v{XRAW+q}')
        a.i(f'v_and_b32 v{XS[2*q+1]}, 0xffff0000, v{XRAW+q}')
    T = dict(t0=6, t1=7, acc=44, rd=48, mean=76, rinv=77)
    vm, vr = ln_stats(a, XS, vrow, T)
    a.i('s_waitcnt vmcnt(0)')
    ln_apply(a, XS, vm, vr, list(range(CA, CA + 24)), list(range(SA, SA + 24)))
    plane_addr(a, 6, vrow, 5, 7)
    for q in range(6):
        a.i(f'ds_write_b128 v6, v[{XS[4*q]}:{XS[4*q]+3}] offset:{L_HP + 16*q}')
    a.i('s_waitcnt lgkmcnt(0)')
    a.i('s_barrier')
    vj, vf = 1, 2
    a.i(f'v_lshrrev_b32 v{vj}, 2, v0')
    a.i(f'v_and_b32 v{vf}, 3, v0')
    pool = Pool(8, 200)
    cx = CX(a, pool)
    R = fft_regs(a, pool, vj, vf)
    va = pool.get()
    a.i(f'v_mul_u32_u24 v{va}, {HP_PITCH}, v{vf}')
    a.i(f'v_lshlrev_b32 v4, 2, v{vj}')
    a.i(f'v_add_u32 v{va}, v{va}, v4')
    z = []
    for r in range(12):
        c = cx.new()
        a.i(f'ds_read_b32 v{c[0]}, v{va} offset:{L_HP + 192*r}')
        a.i(f'ds_read_b32 v{c[1]}, v{va} offset:{L_HP + 4*HP_PITCH + 192*r}')
        z.append(c)
    a.i('s_waitcnt lgkmcnt(0)')
    Z = fft576(a, cx, pool, z, +1, R)
    vw = pool.get()
    a.i(f'v_mul_u32_u24 v{vw}, {FP2}, v{vf}')
    a.i(f'v_lshlrev_b32 v4, 3, v{vj}')
    a.i(f'v_add_u32 v{vw}, v{vw}, v4')
    for q in list(range(6, 12)) + [12]:
        c = Z[q % 12]
        a.i(f'ds_write_b32 v{vw}, v{c[0]} offset:{L_MIR + 384*(q-6)}')
        a.i(f'ds_write_b32 v{vw}, v{c[1]} offset:{L_MIR + 384*(q-6) + 4}')
    for q in range(7, 12):
        cx.free(Z[q])
    a.i('s_waitcnt lgkmcnt(0)')
    a.i('s_barrier')
    vm2 = pool.get()
    a.i(f'v_mul_u32_u24 v{vm2}, {FP2}, v{vf}')
    a.i(f'v_lshlrev_b32 v4, 3, v{vj}')
    a.i(f'v_sub_u32 v{vm2}, v{vm2}, v4')
    a.i(f'v_add_u32 v{vm2}, {L_MIR}, v{vm2}')
    M = []
    for i in range(7):
        b = pool.get_aligned(2, 2)
        a.i(f'ds_read_b64 v[{b}:{b+1}], v{vm2} offset:{384*(6-i)}')
        M.append((b, b + 1))
    vs = pool.get()
    a.i(f'v_lshlrev_b32 v{vs}, 14, v{vj}')
    a.i(f'v_lshlrev_b32 v4, 4, v{vf}')
    a.i(f'v_add_u32 v{vs}, v{vs}, v4')
    a.i('s_lshl_b32 s21, s20, 3')
    a.i(f'v_add_u32 v{vs}, s21, v{vs}')
    for i in range(7):
        a.i(f's_waitcnt lgkmcnt({6-i})')
        zk = Z[i]; zm = M[i]
        o = pool.get_aligned(4, 4)
        a.i(f'v_add_f32 v{o}, v{zk[0]}, v{zm[0]}')
        a.i(f'v_sub_f32 v{o+1}, v{zk[1]}, v{zm[1]}')
        a.i(f'v_add_f32 v{o+2}, v{zk[1]}, v{zm[1]}')
        a.i(f'v_sub_f32 v{o+3}, v{zm[0]}, v{zk[0]}')
        a.i(f's_mov_b32 s22, {i*48*16384}')
        a.i(f'buffer_store_dwordx4 v[{o}:{o+3}], v{vs}, s[16:19], s22 offen')
        cx.free(zk); cx.free(zm)
    a.label('K1_END')
    a.i('s_endpgm')
    return name, max(pool.maxused, 128), NWG, NT, LDS_BYTES

def gen_irfft_ln(a):
    name = 'irfft_ln_kernel'
    kernel_begin(a, name)
    a.i(f's_cmp_ge_u32 s2, {NWG}')
    a.i('s_cbranch_scc1 K3_END')
    a.i(f's_load_dwordx2 s[4:5], s[0:1], {KA_X}')
    a.i(f's_load_dwordx2 s[6:7], s[0:1], {KA_WS}')
    a.i('s_waitcnt lgkmcnt(0)')
    srd(a, 8, 4, 5, S * D * 2)
    srd(a, 12, 6, 7, SZ_MOD, WS_MOD)
    srd(a, 16, 6, 7, SZ_XF, WS_XF)
    srd(a, 24, 6, 7, SZ_X2, WS_X2)
    srd(a, 28, 6, 7, SZ_X2, WS_H2)
    a.i('s_lshl_b32 s20, s2, 3')
    vj, vf = 1, 2
    a.i(f'v_lshrrev_b32 v{vj}, 2, v0')
    a.i(f'v_and_b32 v{vf}, 3, v0')
    pool = Pool(8, 200)
    cx = CX(a, pool)
    vs = pool.get()
    a.i(f'v_lshlrev_b32 v{vs}, 14, v{vj}')
    a.i(f'v_lshlrev_b32 v4, 4, v{vf}')
    a.i(f'v_add_u32 v{vs}, v{vs}, v4')
    a.i('s_lshl_b32 s21, s20, 3')
    a.i(f'v_add_u32 v{vs}, s21, v{vs}')
    L = []
    for i in range(7):
        o = pool.get_aligned(4, 4)
        a.i(f's_mov_b32 s22, {i*48*16384}')
        a.i(f'buffer_load_dwordx4 v[{o}:{o+3}], v{vs}, s[16:19], s22 offen')
        L.append(o)
    R = fft_regs(a, pool, vj, vf)
    a.i(f'v_cmp_eq_u32 vcc, 0, v{vj}')
    vw = pool.get()
    a.i(f'v_mul_u32_u24 v{vw}, {FP2}, v{vf}')
    a.i(f'v_lshlrev_b32 v4, 3, v{vj}')
    a.i(f'v_sub_u32 v{vw}, v{vw}, v4')
    a.i(f'v_add_u32 v{vw}, {L_MIR}, v{vw}')
    own = []
    for i in range(7):
        o = L[i]
        a.i(f's_waitcnt vmcnt({6-i})')
        if i in (0, 6):
            a.i(f'v_cndmask_b32 v{o+1}, v{o+1}, 0, vcc')
            a.i(f'v_cndmask_b32 v{o+3}, v{o+3}, 0, vcc')
        z = cx.new()
        a.i(f'v_sub_f32 v{z[0]}, v{o}, v{o+3}')
        a.i(f'v_add_f32 v{z[1]}, v{o+1}, v{o+2}')
        if i < 6:
            m = pool.get_aligned(2, 2)
            a.i(f'v_add_f32 v{m}, v{o}, v{o+3}')
            a.i(f'v_sub_f32 v{m+1}, v{o+2}, v{o+1}')
            a.i(f'ds_write_b64 v{vw}, v[{m}:{m+1}] offset:{384*(6-i)}')
            pool.put(m, m + 1)
            own.append(z)
        else:
            m = pool.get_aligned(2, 2)
            a.i(f'v_mov_b32 v{m}, v{z[0]}')
            a.i(f'v_mov_b32 v{m+1}, v{z[1]}')
            cx.free(z)
            a.i(f'v_mul_u32_u24 v4, {FP2}, v{vf}')
            a.i(f'v_add_u32 v4, {L_MIR}, v4')
            a.i(f'v_add_u32 v5, {FP2 - 8}, v4')
            a.i('v_cndmask_b32 v4, v5, v4, vcc')
            a.i(f'ds_write_b64 v4, v[{m}:{m+1}]')
            pool.put(m, m + 1)
        pool.put(o, o + 1, o + 2, o + 3)
    a.i('s_waitcnt lgkmcnt(0)')
    a.i('s_barrier')
    vr = pool.get()
    a.i(f'v_mul_u32_u24 v{vr}, {FP2}, v{vf}')
    a.i(f'v_lshlrev_b32 v4, 3, v{vj}')
    a.i(f'v_add_u32 v{vr}, v{vr}, v4')
    z = list(own)
    for r in range(6, 12):
        b = pool.get_aligned(2, 2)
        a.i(f'ds_read_b64 v[{b}:{b+1}], v{vr} offset:{L_MIR + 384*(r-6)}')
        z.append((b, b + 1))
    a.i('s_waitcnt lgkmcnt(0)')
    Z = fft576(a, cx, pool, z, -1, R)
    va = pool.get()
    a.i(f'v_mul_u32_u24 v{va}, {HP_PITCH}, v{vf}')
    a.i(f'v_lshlrev_b32 v4, 2, v{vj}')
    a.i(f'v_add_u32 v{va}, v{va}, v4')
    SC = 1.0 / (2.0 * S * D)
    for q in range(12):
        c = Z[q]
        a.i(f'v_mul_f32 v{c[0]}, {fb(SC)}, v{c[0]}')
        a.i(f'v_mul_f32 v{c[1]}, {fb(SC)}, v{c[1]}')
        bf16_round2(a, c[0], c[1], c[0], c[1])
        a.i(f'ds_write_b32 v{va}, v{c[0]} offset:{L_HP + 192*q}')
        a.i(f'ds_write_b32 v{va}, v{c[1]} offset:{L_HP + 4*HP_PITCH + 192*q}')
        cx.free(c)
    fft_max = pool.maxused
    vrow, vch, vt = 1, 2, 3
    row_decomp(a, vrow, vch, vt)
    a.i(f'v_add_u32 v4, s20, v{vrow}')
    a.i(f'v_mul_u32_u24 v4, {D*2}, v4')
    a.i(f'v_mul_u32_u24 v5, 48, v{vch}')
    a.i('v_add_u32 v4, v4, v5')
    XRAW = 8
    for q in range(3):
        a.i(f'buffer_load_dwordx4 v[{XRAW+4*q}:{XRAW+4*q+3}], v4, s[8:11], 0 offen offset:{16*q}')
    a.i(f'v_mul_u32_u24 v5, 96, v{vch}')
    GA = 80; SB = 104; CB = 128
    a.i(f's_mov_b32 s21, {2*D*4}')
    a.i(f's_mov_b32 s22, {3*D*4}')
    a.i(f's_mov_b32 s23, {4*D*4}')
    for q in range(6):
        a.i(f'buffer_load_dwordx4 v[{GA+4*q}:{GA+4*q+3}], v5, s[12:15], s21 offen offset:{16*q}')
    for q in range(6):
        a.i(f'buffer_load_dwordx4 v[{SB+4*q}:{SB+4*q+3}], v5, s[12:15], s22 offen offset:{16*q}')
    for q in range(6):
        a.i(f'buffer_load_dwordx4 v[{CB+4*q}:{CB+4*q+3}], v5, s[12:15], s23 offen offset:{16*q}')
    a.i('s_waitcnt lgkmcnt(0)')
    a.i('s_barrier')
    plane_addr(a, 6, vrow, 5, 7)
    YS = list(range(20, 44))
    for q in range(6):
        a.i(f'ds_read_b128 v[{YS[4*q]}:{YS[4*q]+3}], v6 offset:{L_HP + 16*q}')
    a.i('s_waitcnt vmcnt(12) lgkmcnt(0)')
    for q in range(12):
        y0, y1 = YS[2*q], YS[2*q+1]
        a.i(f'v_mul_f32 v{y0}, v{y0}, v{GA+2*q}')
        a.i(f'v_mul_f32 v{y1}, v{y1}, v{GA+2*q+1}')
        bf16_round2(a, y0, y1, y0, y1)
        a.i(f'v_lshlrev_b32 v7, 16, v{XRAW+q}')
        a.i(f'v_and_b32 v{XRAW+q}, 0xffff0000, v{XRAW+q}')
        a.i(f'v_add_f32 v{y0}, v7, v{y0}')
        a.i(f'v_add_f32 v{y1}, v{XRAW+q}, v{y1}')
        a.i(f'v_cvt_pk_bf16_f32 v{XRAW+q}, v{y0}, v{y1}')
        a.i(f'v_lshlrev_b32 v{y0}, 16, v{XRAW+q}')
        a.i(f'v_and_b32 v{y1}, 0xffff0000, v{XRAW+q}')
    for q in range(3):
        a.i(f'buffer_store_dwordx4 v[{XRAW+4*q}:{XRAW+4*q+3}], v4, s[24:27], 0 offen offset:{16*q}')
    T = dict(t0=6, t1=7, acc=44, rd=48, mean=76, rinv=77)
    vm, vr_ = ln_stats(a, YS, vrow, T)
    a.i('s_waitcnt vmcnt(3)')
    ln_apply(a, YS, vm, vr_, list(range(CB, CB + 24)), list(range(SB, SB + 24)))
    a.i('s_waitcnt vmcnt(0)')
    for q in range(12):
        a.i(f'v_cvt_pk_bf16_f32 v{XRAW+q}, v{YS[2*q]}, v{YS[2*q+1]}')
    for q in range(3):
        a.i(f'buffer_store_dwordx4 v[{XRAW+4*q}:{XRAW+4*q+3}], v4, s[28:31], 0 offen offset:{16*q}')
    a.label('K3_END')
    a.i('s_endpgm')
    return name, max(fft_max, 152), NWG, NT, LDS_BYTES
```
